```python
import torch

def _softmax(x, axis=-1):
    return torch.softmax(x, dim=axis)

def _gelu(x):
    return torch.nn.functional.gelu(x, approximate='tanh')

def _silu(x):
    return torch.nn.functional.silu(x)

def _sigmoid(x):
    return torch.sigmoid(x)

def _layernorm(x, axis=-1, eps=1e-05):
    m = x.mean(dim=axis, keepdim=True)
    v = x.var(dim=axis, keepdim=True, unbiased=False)
    return (x - m) / torch.sqrt(v + eps)

def _scatter_add(tgt, idx, src, axis=0):
    return tgt.clone().index_add_(axis, idx, src)

def _segment_sum(src, seg, n):
    out = torch.zeros((n,) + src.shape[1:], dtype=src.dtype)
    return out.index_add_(0, seg, src)

def _pad(x, pw):
    flat = tuple((v for pair in reversed(pw) for v in pair))
    return torch.nn.functional.pad(x, flat)
kernel_name = 'standalone__tree_speculative_verify_tree_attention_over_candidate_token_tree__sampling'

def setup_inputs():

    _w = lambda a: (lambda t: t.to(torch.bfloat16) if t.is_floating_point() else t)(torch.as_tensor(a))
    B, Hq, Hkv, T, C, D = (32, 32, 8, 1, 2048, 128)
    tree_mask = torch.zeros((B, T, T), dtype=float)
    for b in range(B):
        parent = torch.zeros(T, dtype=torch.int64)
        for i in range(1, T):
            parent[i] = int(torch.randint(0, i, (1,)).item())
        for i in range(T):
            j = i
            tree_mask[b, i, j] = 1.0
            while j > 0:
                j = parent[j]
                tree_mask[b, i, j] = 1.0
    return {'q': _w((lambda *s: torch.randn(*s, dtype=torch.bfloat16) * 0.8)(B, Hq, T, D)), 'k_cache': _w((lambda *s: torch.randn(*s, dtype=torch.bfloat16) * 0.8)(B, Hkv, C, D)), 'v_cache': _w((lambda *s: torch.randn(*s, dtype=torch.bfloat16) * 0.05)(B, Hkv, C, D)), 'k_tree': _w((lambda *s: torch.randn(*s, dtype=torch.bfloat16) * 0.8)(B, Hkv, T, D)), 'v_tree': _w((lambda *s: torch.randn(*s, dtype=torch.bfloat16) * 0.05)(B, Hkv, T, D)), 'tree_mask': _w(tree_mask)}

def reference(q, k_cache, v_cache, k_tree, v_tree, tree_mask):
    B, Hq, T, D = q.shape
    Hkv, C = (k_cache.shape[1], k_cache.shape[2])
    rep = Hq // Hkv
    kc = (lambda x, n, axis: torch.repeat_interleave(x, n, dim=axis))(k_cache, rep, axis=1)
    vc = (lambda x, n, axis: torch.repeat_interleave(x, n, dim=axis))(v_cache, rep, axis=1)
    kt = (lambda x, n, axis: torch.repeat_interleave(x, n, dim=axis))(k_tree, rep, axis=1)
    vt = (lambda x, n, axis: torch.repeat_interleave(x, n, dim=axis))(v_tree, rep, axis=1)
    k = torch.concatenate([kc, kt], axis=2)
    v = torch.concatenate([vc, vt], axis=2)
    scale = D ** (-0.5)
    scores = torch.einsum('bhqd,bhkd->bhqk', q, k) * scale
    ctx_mask = torch.ones((B, 1, T, C), dtype=scores.dtype)
    tm = tree_mask[:, None, :, :].clone()
    full_mask = torch.concatenate([ctx_mask, tm], axis=-1)
    scores = scores + (1.0 - full_mask) * -1000000000.0
    p = _softmax(scores, axis=-1)
    return torch.einsum('bhqk,bhkd->bhqd', p, v)
```

```python
import sys, argparse

NAME = "standalone__tree_speculative_verify_tree_attention_over_candidate_token_tree__sampling"
HEADER = open("cdna_kernels/%s.s.ref" % NAME).read().split("; Override launch")[0]

def gen(W=8, R=32, flags="nt", G=0, rot=0, lds_min=0, stamps=False, name=None):
    kname = (name or NAME) + "_kernel"
    NK = 2048 // W
    NL = NK // 4
    NG = NL // 4
    out = []
    e = out.append
    v_lane = 1; v_offK = 2; v_offV = 3; v_m0 = 4; v_m1 = 5
    v_max = 6; v_sum = 7; v_t0 = 8; v_t1 = 9; v_t2 = 10; v_t3 = 11
    v_Q = 12
    v_KT = 16
    v_VT = 20
    v_A = 24
    v_acc = 28
    v_D = 36
    v_S = 52
    v_ring = (v_S + NG + 3) // 4 * 4
    nv = v_ring + 4 * R
    assert nv <= 512
    s_w = 20; s_off = 21; s_c = 22; s_mask = 23
    s_M1 = 24; s_M2 = 26; s_M3 = 28
    s_K = 32; s_V = 36; s_Q = 40; s_KT = 44; s_VT = 48; s_O = 52
    s_rot = 56; s_tmp = 57
    lds_ml = W * 2048
    lds_size = max(lds_ml + (W + 1) * 32, lds_min)

    q = []
    def vm_issue(tag): q.append(tag)
    def vm_wait(tag):
        if tag not in q: return
        idx = q.index(tag)
        n = len(q) - 1 - idx
        assert n <= 63
        e(f"    s_waitcnt vmcnt({n})")
        del q[:idx + 1]

    def off(i):
        if G == 0: return i * 1024
        return (i // G) * (W * G * 1024) + (i % G) * 1024
    span = NK * 256 if G == 0 else 2048 * 256

    cur_soff = [None]
    def load(i):
        isV = i >= NL
        j = i - NL if isV else i
        o = off(j)
        hi, lo = o & ~4095, o & 4095
        key = (hi,)
        if cur_soff[0] != key:
            if rot:
                e(f"    s_add_u32 s{s_off}, s{s_rot}, 0x{hi:x}")
                e(f"    s_and_b32 s{s_off}, s{s_off}, 0x{span-1:x}")
            else:
                e(f"    s_mov_b32 s{s_off}, 0x{hi:x}")
            cur_soff[0] = key
        slot = v_ring + 4 * (i % R)
        srd = s_V if isV else s_K
        vo = v_offV if isV else v_offK
        e(f"    buffer_load_dwordx4 v[{slot}:{slot+3}], v{vo}, s[{srd}:{srd+3}], s{s_off} offen offset:{lo} {flags}")
        vm_issue(("L", i))

    e(HEADER.rstrip())
    e("; Override launch geometry by editing the next line (default: block=256,")
    e(f"; @launch grid=(256,1,1) block=({W*64},1,1) lds={lds_size}")
    e('.amdgcn_target "amdgcn-amd-amdhsa--gfx950"')
    e(".text")
    e(f".globl {kname}")
    e(".p2align 8")
    e(f".type {kname},@function")
    e(f"{kname}:")
    e("    s_cmp_ge_u32 s2, 256")
    e("    s_cbranch_scc1 L_end")
    e("    s_load_dwordx16 s[4:19], s[0:1], 0")
    if stamps:
        e("    s_memrealtime s[60:61]")
        e("    s_load_dwordx2 s[68:69], s[0:1], 64")
    e(f"    v_lshrrev_b32 v{v_t0}, 6, v0")
    e(f"    v_and_b32 v{v_lane}, 63, v0")
    e(f"    v_readfirstlane_b32 s{s_w}, v{v_t0}")
    e(f"    v_lshlrev_b32 v{v_offV}, 4, v{v_lane}")
    e(f"    v_and_b32 v{v_t0}, 12, v{v_lane}")
    e(f"    v_lshlrev_b32 v{v_t0}, 6, v{v_t0}")
    e(f"    v_and_b32 v{v_t1}, 48, v{v_lane}")
    e(f"    v_lshlrev_b32 v{v_t1}, 2, v{v_t1}")
    e(f"    v_and_b32 v{v_t2}, 48, v{v_offV}")
    e(f"    v_or3_b32 v{v_offK}, v{v_t0}, v{v_t1}, v{v_t2}")
    wstride = NK * 256 if G == 0 else G * 1024
    e(f"    s_mul_i32 s{s_tmp}, s{s_w}, {wstride}")
    e(f"    s_lshl_b32 s3, s2, 19")
    e(f"    s_add_u32 s3, s3, s{s_tmp}")
    if rot:
        e(f"    s_mul_i32 s{s_rot}, s2, {rot}")
    e(f"    s_mov_b32 s{s_K+2}, 0x{span - (0 if G == 0 else 0):x}")
    if G != 0:
        e(f"    s_sub_u32 s{s_K+2}, s{s_K+2}, s{s_tmp}")
    e(f"    s_mov_b32 s{s_K+3}, 0x20000")
    e(f"    s_mov_b32 s{s_V+2}, s{s_K+2}")
    e(f"    s_mov_b32 s{s_V+3}, 0x20000")
    e(f"    s_mov_b32 s{s_Q+2}, 1024")
    e(f"    s_mov_b32 s{s_Q+3}, 0x20000")
    e(f"    s_lshl_b32 s{s_tmp}, s2, 10")
    e("    s_waitcnt lgkmcnt(0)")
    e(f"    s_add_u32 s{s_Q}, s4, s{s_tmp}")
    e(f"    s_addc_u32 s{s_Q+1}, s5, 0")
    e(f"    s_add_u32 s{s_K}, s6, s3")
    e(f"    s_addc_u32 s{s_K+1}, s7, 0")
    e(f"    buffer_load_dwordx4 v[{v_Q}:{v_Q+3}], v{v_offK}, s[{s_Q}:{s_Q+3}], 0 offen")
    vm_issue("Q")
    e(f"    s_add_u32 s{s_V}, s8, s3")
    e(f"    s_addc_u32 s{s_V+1}, s9, 0")
    total = 2 * NL
    nxt = 0
    while nxt < min(R, total):
        load(nxt); nxt += 1
    e(f"    s_add_u32 s{s_O}, s16, s{s_tmp}")
    e(f"    s_addc_u32 s{s_O+1}, s17, 0")
    e(f"    s_mov_b32 s{s_O+2}, 1024")
    e(f"    s_mov_b32 s{s_O+3}, 0x20000")
    e(f"    s_lshl_b32 s{s_tmp}, s2, 8")
    e(f"    s_add_u32 s{s_KT}, s10, s{s_tmp}")
    e(f"    s_addc_u32 s{s_KT+1}, s11, 0")
    e(f"    s_mov_b32 s{s_KT+2}, 256")
    e(f"    s_mov_b32 s{s_KT+3}, 0x20000")
    e(f"    s_add_u32 s{s_VT}, s12, s{s_tmp}")
    e(f"    s_addc_u32 s{s_VT+1}, s13, 0")
    e(f"    s_mov_b32 s{s_VT+2}, 256")
    e(f"    s_mov_b32 s{s_VT+3}, 0x20000")
    e(f"    buffer_load_dwordx4 v[{v_KT}:{v_KT+3}], v{v_offK}, s[{s_KT}:{s_KT+3}], 0 offen")
    vm_issue("KT")
    e(f"    v_and_b32 v{v_t0}, 0xf0, v{v_offV}")
    e(f"    buffer_load_dwordx4 v[{v_VT}:{v_VT+3}], v{v_t0}, s[{s_VT}:{s_VT+3}], 0 offen")
    vm_issue("VT")
    e(f"    s_lshr_b32 s{s_tmp}, s2, 4")
    e(f"    s_lshl_b32 s{s_tmp}, s{s_tmp}, 2")
    e(f"    s_load_dword s{s_mask}, s[14:15], s{s_tmp}")
    e(f"    s_mov_b32 s{s_c}, 0x3e0293ee")
    out[-1] = f"    s_mov_b32 s{s_c}, 0x{f2u(128**-0.5 * 1.4426950408889634):08x}"
    for sm, val in ((s_M1, 0x22222222), (s_M2, 0x44444444), (s_M3, 0x88888888)):
        e(f"    s_mov_b32 s{sm}, 0x{val:x}")
        e(f"    s_mov_b32 s{sm+1}, 0x{val:x}")
    e(f"    v_mov_b32 v{v_t0}, 0xffff")
    e(f"    v_mov_b32 v{v_t1}, 0xffff0000")
    e(f"    v_cndmask_b32 v{v_m0}, v{v_t0}, v{v_t1}, s[{s_M1}:{s_M1+1}]")
    e(f"    v_cndmask_b32 v{v_m0}, v{v_m0}, 0, s[{s_M2}:{s_M2+1}]")
    e(f"    v_cndmask_b32 v{v_m0}, v{v_m0}, 0, s[{s_M3}:{s_M3+1}]")
    e(f"    v_cndmask_b32 v{v_m1}, 0, v{v_t0}, s[{s_M2}:{s_M2+1}]")
    e(f"    v_cndmask_b32 v{v_m1}, v{v_m1}, v{v_t1}, s[{s_M3}:{s_M3+1}]")
    for k in range(8):
        e(f"    v_mov_b32 v{v_acc+k}, 0")
    e(f"    v_mov_b32 v{v_max}, 0xff7fffff")

    def D(m, r): return v_D + 4 * m + r
    for n in range(NG):
        for qq in range(4):
            i = 4 * n + qq
            vm_wait(("L", i))
            if stamps and i == 0:
                e("    s_memrealtime s[62:63]")
            slot = v_ring + 4 * (i % R)
            e(f"    v_mfma_f32_16x16x32_bf16 v[{D(qq,0)}:{D(qq,3)}], v[{slot}:{slot+3}], v[{v_Q}:{v_Q+3}], 0")
            if nxt < total:
                load(nxt); nxt += 1
        e("    s_nop 7")
        X = [v_t0, v_t1, v_t2, v_t3]
        for s in range(4):
            e(f"    v_cndmask_b32 v{X[s]}, v{D(s,0)}, v{D((s+1)&3,1)}, s[{s_M1}:{s_M1+1}]")
        for s in range(4):
            e(f"    v_cndmask_b32 v{X[s]}, v{X[s]}, v{D((s+2)&3,2)}, s[{s_M2}:{s_M2+1}]")
        for s in (2, 3, 0, 1):
            e(f"    v_cndmask_b32 v{X[s]}, v{X[s]}, v{D((s+3)&3,3)}, s[{s_M3}:{s_M3+1}]")
        e(f"    v_add_f32_dpp v{X[2]}, v{X[3]}, v{X[2]} quad_perm:[3,0,1,2] row_mask:0xf bank_mask:0xf")
        e(f"    s_nop 0")
        e(f"    v_add_f32_dpp v{X[0]}, v{X[1]}, v{X[0]} quad_perm:[3,0,1,2] row_mask:0xf bank_mask:0xf")
        e(f"    s_nop 1")
        e(f"    v_add_f32_dpp v{v_S+n}, v{X[2]}, v{X[0]} quad_perm:[2,3,0,1] row_mask:0xf bank_mask:0xf")
        e(f"    v_max_f32 v{v_max}, v{v_max}, v{v_S+n}")
        if n == min(NG - 1, (R + 3) // 4):
            vm_wait("KT")
            e(f"    v_mfma_f32_16x16x32_bf16 v[{D(0,0)}:{D(0,3)}], v[{v_KT}:{v_KT+3}], v[{v_Q}:{v_Q+3}], 0")
            e("    s_waitcnt lgkmcnt(0)")
            e(f"    s_bitcmp1_b32 s2, 3")
            e(f"    s_cselect_b32 s{s_tmp}, 0, 16")
            e(f"    s_lshl_b32 s{s_mask}, s{s_mask}, s{s_tmp}")
            e(f"    s_and_b32 s{s_mask}, s{s_mask}, 0xffff0000")
            e("    s_nop 4")
            e(f"    v_cndmask_b32 v{v_t0}, v{D(0,0)}, v{D(0,1)}, s[{s_M1}:{s_M1+1}]")
            e(f"    v_cndmask_b32 v{v_t0}, v{v_t0}, v{D(0,2)}, s[{s_M2}:{s_M2+1}]")
            e(f"    v_cndmask_b32 v{v_t0}, v{v_t0}, v{D(0,3)}, s[{s_M3}:{s_M3+1}]")
            e(f"    v_mov_b32 v{v_t1}, s{s_mask}")
            e(f"    v_sub_f32 v{v_t1}, 1.0, v{v_t1}")
            e(f"    v_add_f32_dpp v{v_t0}, v{v_t0}, v{v_t0} quad_perm:[1,0,3,2] row_mask:0xf bank_mask:0xf")
            e(f"    v_mul_f32 v{v_t1}, 0x{f2u(-1e9*1.4426950408889634):08x}, v{v_t1}")
            e(f"    s_nop 0")
            e(f"    v_add_f32_dpp v{v_t0}, v{v_t0}, v{v_t0} quad_perm:[2,3,0,1] row_mask:0xf bank_mask:0xf")
            e(f"    s_nop 0")
            e(f"    v_fma_f32 v{v_KT}, v{v_t0}, s{s_c}, v{v_t1}")
            e(f"    v_mov_b32 v{v_KT+1}, 1.0")
    e("    s_nop 1")
    e(f"    v_max_f32_dpp v{v_max}, v{v_max}, v{v_max} quad_perm:[1,0,3,2] row_mask:0xf bank_mask:0xf")
    e("    s_nop 1")
    e(f"    v_max_f32_dpp v{v_max}, v{v_max}, v{v_max} quad_perm:[2,3,0,1] row_mask:0xf bank_mask:0xf")
    e("    s_nop 0")
    e(f"    v_mov_b32 v{v_t0}, v{v_max}")
    e("    s_nop 1")
    e(f"    v_permlane16_swap_b32 v{v_t0}, v{v_max}")
    e("    s_nop 1")
    e(f"    v_max_f32 v{v_max}, v{v_max}, v{v_t0}")
    e("    s_nop 0")
    e(f"    v_mov_b32 v{v_t0}, v{v_max}")
    e("    s_nop 1")
    e(f"    v_permlane32_swap_b32 v{v_t0}, v{v_max}")
    e("    s_nop 1")
    e(f"    v_max_f32 v{v_max}, v{v_max}, v{v_t0}")
    e(f"    v_mul_f32 v{v_max}, s{s_c}, v{v_max}")
    for n in range(NG):
        e(f"    v_fma_f32 v{v_S+n}, v{v_S+n}, s{s_c}, -v{v_max}")
    for n in range(NG):
        e(f"    v_exp_f32 v{v_S+n}, v{v_S+n}")
    e("    s_nop 0")
    e(f"    v_mov_b32 v{v_sum}, v{v_S}")
    for n in range(1, NG):
        e(f"    v_add_f32 v{v_sum}, v{v_sum}, v{v_S+n}")
    for n in range(NG):
        e(f"    v_cvt_pk_bf16_f32 v{v_S+n}, v{v_S+n}, v{v_S+n}")
    e(f"    v_add_f32_dpp v{v_sum}, v{v_sum}, v{v_sum} quad_perm:[1,0,3,2] row_mask:0xf bank_mask:0xf")
    e("    s_nop 1")
    e(f"    v_add_f32_dpp v{v_sum}, v{v_sum}, v{v_sum} quad_perm:[2,3,0,1] row_mask:0xf bank_mask:0xf")
    e("    s_nop 0")
    e(f"    v_mov_b32 v{v_t0}, v{v_sum}")
    e("    s_nop 1")
    e(f"    v_permlane16_swap_b32 v{v_t0}, v{v_sum}")
    e("    s_nop 1")
    e(f"    v_add_f32 v{v_sum}, v{v_sum}, v{v_t0}")
    e("    s_nop 0")
    e(f"    v_mov_b32 v{v_t0}, v{v_sum}")
    e("    s_nop 1")
    e(f"    v_permlane32_swap_b32 v{v_t0}, v{v_sum}")
    e("    s_nop 1")
    e(f"    v_add_f32 v{v_sum}, v{v_sum}, v{v_t0}")
    assert v_sum == v_max + 1 and v_max % 2 == 0
    e(f"    v_and_b32 v{v_t0}, 12, v{v_lane}")
    e(f"    v_lshlrev_b32 v{v_t0}, 1, v{v_t0}")
    e(f"    s_lshl_b32 s{s_tmp}, s{s_w}, 5")
    e(f"    v_add_u32 v{v_t1}, s{s_tmp}, v{v_t0}")
    e(f"    s_mov_b64 exec, 0x1111")
    e(f"    ds_write_b64 v{v_t1}, v[{v_max}:{v_max+1}] offset:{lds_ml}")
    e(f"    s_cmp_lg_u32 s{s_w}, 0")
    e(f"    s_cbranch_scc1 L_notree")
    e(f"    ds_write_b64 v{v_t0}, v[{v_KT}:{v_KT+1}] offset:{lds_ml + W*32}")
    e("L_notree:")
    e(f"    s_mov_b64 exec, -1")
    for j in range(NL):
        i = NL + j
        n, qq = j // 4, j % 4
        A = v_A + 2 * (j & 1)
        e(f"    v_and_b32_dpp v{A}, v{v_S+n}, v{v_m0} quad_perm:[{qq},{qq},{qq},{qq}] row_mask:0xf bank_mask:0xf")
        e(f"    v_and_b32_dpp v{A+1}, v{v_S+n}, v{v_m1} quad_perm:[{qq},{qq},{qq},{qq}] row_mask:0xf bank_mask:0xf")
        e("    s_nop 0" if ("L", i) in q else "    s_nop 1")
        vm_wait(("L", i))
        slot = v_ring + 4 * (i % R)
        e(f"    v_mfma_f32_16x16x16_bf16 v[{v_acc}:{v_acc+3}], v[{A}:{A+1}], v[{slot}:{slot+1}], v[{v_acc}:{v_acc+3}]")
        e(f"    v_mfma_f32_16x16x16_bf16 v[{v_acc+4}:{v_acc+7}], v[{A}:{A+1}], v[{slot+2}:{slot+3}], v[{v_acc+4}:{v_acc+7}]")
        if nxt < total:
            load(nxt); nxt += 1
    vm_wait("VT")
    if stamps:
        e("    s_memrealtime s[64:65]")
    e(f"    s_lshl_b32 s{s_tmp}, s{s_w}, 11")
    e(f"    v_add_u32 v{v_t0}, s{s_tmp}, v{v_offV}")
    e("    s_nop 6")
    e(f"    ds_write_b128 v{v_t0}, v[{v_acc}:{v_acc+3}]")
    e(f"    ds_write_b128 v{v_t0}, v[{v_acc+4}:{v_acc+7}] offset:1024")
    e("    s_waitcnt lgkmcnt(0)")
    e("    s_barrier")
    e(f"    s_cmp_lg_u32 s{s_w}, 0")
    e(f"    s_cbranch_scc1 L_fin")
    vml = v_ring
    vo = (vml + 2 * (W + 1) + 3) // 4 * 4
    assert vo + 8 * W <= max(nv, 128), (vo + 8*W, nv)
    nv = max(nv, vo + 8 * W)
    e(f"    v_lshrrev_b32 v{v_t0}, 4, v{v_lane}")
    e(f"    v_lshlrev_b32 v{v_t0}, 3, v{v_t0}")
    for w in range(W + 1):
        e(f"    ds_read_b64 v[{vml+2*w}:{vml+2*w+1}], v{v_t0} offset:{lds_ml + w*32}")
    nb = 0
    for w in range(W):
        e(f"    ds_read_b128 v[{vo+8*w}:{vo+8*w+3}], v{v_offV} offset:{w*2048}")
        e(f"    ds_read_b128 v[{vo+8*w+4}:{vo+8*w+7}], v{v_offV} offset:{w*2048+1024}")
    e(f"    s_waitcnt lgkmcnt({min(15, 2*W)})")
    if 2 * W > 15:
        pass
    e(f"    v_max_f32 v{v_max}, v{vml}, v{vml+2}")
    for w in range(2, W + 1):
        e(f"    v_max_f32 v{v_max}, v{v_max}, v{vml+2*w}")
    for w in range(W + 1):
        e(f"    v_sub_f32 v{vml+2*w}, v{vml+2*w}, v{v_max}")
    for w in range(W + 1):
        e(f"    v_exp_f32 v{vml+2*w}, v{vml+2*w}")
    e("    s_nop 0")
    e(f"    v_mul_f32 v{v_sum}, v{vml}, v{vml+1}")
    for w in range(1, W + 1):
        e(f"    v_fmac_f32 v{v_sum}, v{vml+2*w}, v{vml+2*w+1}")
    e(f"    v_rcp_f32 v{v_sum}, v{v_sum}")
    fT = vml + 2 * W
    for k in range(4):
        e(f"    v_lshlrev_b32 v{v_acc+2*k}, 16, v{v_VT+k}")
        e(f"    v_and_b32 v{v_acc+2*k+1}, 0xffff0000, v{v_VT+k}")
    for k in range(8):
        e(f"    v_mul_f32 v{v_acc+k}, v{fT}, v{v_acc+k}")
    for w in range(W):
        rem = 2 * (W - 1 - w)
        e(f"    s_waitcnt lgkmcnt({min(15, rem)})")
        for k in range(8):
            e(f"    v_fmac_f32 v{v_acc+k}, v{vml+2*w}, v{vo+8*w+k}")
    for k in range(8):
        e(f"    v_mul_f32 v{v_acc+k}, v{v_sum}, v{v_acc+k}")
    for k in range(4):
        e(f"    v_cvt_pk_bf16_f32 v{v_t0+k}, v{v_acc+2*k}, v{v_acc+2*k+1}")
    e(f"    buffer_store_dwordx4 v[{v_t0}:{v_t0+3}], v{v_offV}, s[{s_O}:{s_O+3}], 0 offen")
    e("L_fin:")
    if stamps:
        e("    s_memrealtime s[66:67]")
        e("    s_waitcnt lgkmcnt(0)")
        e(f"    s_mul_i32 s{s_tmp}, s2, {W}")
        e(f"    s_add_u32 s{s_tmp}, s{s_tmp}, s{s_w}")
        e(f"    s_lshl_b32 s{s_tmp}, s{s_tmp}, 6")
        e(f"    s_add_u32 s72, s68, s{s_tmp}")
        e(f"    s_addc_u32 s73, s69, 0")
        e(f"    s_mov_b32 s74, 64")
        e(f"    s_mov_b32 s75, 0x20000")
        e(f"    s_getreg_b32 s70, hwreg(HW_REG_XCC_ID)")
        e(f"    s_getreg_b32 s71, hwreg(HW_REG_HW_ID)")
        for k in range(8):
            e(f"    v_mov_b32 v{v_D+k}, s{60+k}")
        e(f"    v_mov_b32 v{v_D+8}, s70")
        e(f"    v_mov_b32 v{v_D+9}, s71")
        e(f"    v_mov_b32 v{v_t0}, 0")
        e(f"    s_mov_b64 exec, 1")
        e(f"    buffer_store_dwordx4 v[{v_D}:{v_D+3}], v{v_t0}, s[72:75], 0 offen")
        e(f"    buffer_store_dwordx4 v[{v_D+4}:{v_D+7}], v{v_t0}, s[72:75], 0 offen offset:16")
        e(f"    buffer_store_dwordx2 v[{v_D+8}:{v_D+9}], v{v_t0}, s[72:75], 0 offen offset:32")
    e("L_end:")
    e("    s_endpgm")
    e('.section .rodata,"a"')
    e(".p2align 6")
    e(f".amdhsa_kernel {kname}")
    nvv = min(nv, 512)
    e(f"  .amdhsa_next_free_vgpr {nvv}")
    e("  .amdhsa_next_free_sgpr 96")
    e(f"  .amdhsa_accum_offset {min(256, (nvv+3)//4*4)}")
    e("  .amdhsa_group_segment_fixed_size 0")
    e("  .amdhsa_kernarg_size 72")
    e("  .amdhsa_user_sgpr_count 2")
    e("  .amdhsa_user_sgpr_kernarg_segment_ptr 1")
    e("  .amdhsa_system_sgpr_workgroup_id_x 1")
    e(".end_amdhsa_kernel")
    return "\n".join(x for x in out if x is not None) + "\n"

import struct
def f2u(x): return struct.unpack("<I", struct.pack("<f", x))[0]

if __name__ == "__main__":
    ap = argparse.ArgumentParser()
    ap.add_argument("-W", type=int, default=8)
    ap.add_argument("-R", type=int, default=32)
    ap.add_argument("--flags", default="nt")
    ap.add_argument("-G", type=int, default=0)
    ap.add_argument("--rot", type=int, default=0)
    ap.add_argument("--lds", type=int, default=0)
    ap.add_argument("--stamps", action="store_true")
    ap.add_argument("-o", default="/dev/stdout")
    a = ap.parse_args()
    open(a.o, "w").write(gen(a.W, a.R, a.flags, a.G, a.rot, a.lds, a.stamps))
```

```python
import sys, argparse

NAME = "standalone__tree_speculative_verify_tree_attention_over_candidate_token_tree__sampling"
HEADER = open("cdna_kernels/%s.s.ref" % NAME).read().split("; Override launch")[0]

def gen(W=8, R=32, flags="nt", G=0, rot=0, lds_min=0, stamps=False, name=None):
    kname = (name or NAME) + "_kernel"
    NK = 2048 // W
    NL = NK // 4
    NG = NL // 4
    out = []
    e = out.append
    v_lane = 1; v_offK = 2; v_offV = 3; v_m0 = 4; v_m1 = 5
    v_max = 6; v_sum = 7; v_t0 = 8; v_t1 = 9; v_t2 = 10; v_t3 = 11
    v_Q = 12
    v_KT = 16
    v_VT = 20
    v_A = 24
    v_acc = 28
    v_D = 36
    v_S = 52
    v_ring = (v_S + NG + 3) // 4 * 4
    nv = v_ring + 4 * R
    assert nv <= 512
    s_w = 20; s_off = 21; s_c = 22; s_mask = 23
    s_M1 = 24; s_M2 = 26; s_M3 = 28
    s_K = 32; s_V = 36; s_Q = 40; s_KT = 44; s_VT = 48; s_O = 52
    s_rot = 56; s_tmp = 57
    lds_ml = W * 2048
    lds_size = max(lds_ml + (W + 1) * 32, lds_min)

    q = []
    def vm_issue(tag): q.append(tag)
    def vm_wait(tag):
        if tag not in q: return
        idx = q.index(tag)
        n = len(q) - 1 - idx
        assert n <= 63
        e(f"    s_waitcnt vmcnt({n})")
        del q[:idx + 1]

    def off(i):
        if G == 0: return i * 1024
        return (i // G) * (W * G * 1024) + (i % G) * 1024
    span = NK * 256 if G == 0 else 2048 * 256

    cur_soff = [None]
    def load(i):
        isV = i >= NL
        j = i - NL if isV else i
        o = off(j)
        hi, lo = o & ~4095, o & 4095
        key = (hi,)
        if cur_soff[0] != key:
            if rot:
                e(f"    s_add_u32 s{s_off}, s{s_rot}, 0x{hi:x}")
                e(f"    s_and_b32 s{s_off}, s{s_off}, 0x{span-1:x}")
            else:
                e(f"    s_mov_b32 s{s_off}, 0x{hi:x}")
            cur_soff[0] = key
        slot = v_ring + 4 * (i % R)
        srd = s_V if isV else s_K
        vo = v_offV if isV else v_offK
        e(f"    buffer_load_dwordx4 v[{slot}:{slot+3}], v{vo}, s[{srd}:{srd+3}], s{s_off} offen offset:{lo} {flags}")
        vm_issue(("L", i))

    e(HEADER.rstrip())
    e("; Override launch geometry by editing the next line (default: block=256,")
    e(f"; @launch grid=(256,1,1) block=({W*64},1,1) lds={lds_size}")
    e('.amdgcn_target "amdgcn-amd-amdhsa--gfx950"')
    e(".text")
    e(f".globl {kname}")
    e(".p2align 8")
    e(f".type {kname},@function")
    e(f"{kname}:")
    e("    s_cmp_ge_u32 s2, 256")
    e("    s_cbranch_scc1 L_end")
    e("    s_load_dwordx16 s[4:19], s[0:1], 0")
    if stamps:
        e("    s_memrealtime s[60:61]")
        e("    s_load_dwordx2 s[68:69], s[0:1], 64")
    e(f"    v_lshrrev_b32 v{v_t0}, 6, v0")
    e(f"    v_and_b32 v{v_lane}, 63, v0")
    e(f"    v_readfirstlane_b32 s{s_w}, v{v_t0}")
    e(f"    v_lshlrev_b32 v{v_offV}, 4, v{v_lane}")
    e(f"    v_and_b32 v{v_t0}, 12, v{v_lane}")
    e(f"    v_lshlrev_b32 v{v_t0}, 6, v{v_t0}")
    e(f"    v_and_b32 v{v_t1}, 48, v{v_lane}")
    e(f"    v_lshlrev_b32 v{v_t1}, 2, v{v_t1}")
    e(f"    v_and_b32 v{v_t2}, 48, v{v_offV}")
    e(f"    v_or3_b32 v{v_offK}, v{v_t0}, v{v_t1}, v{v_t2}")
    wstride = NK * 256 if G == 0 else G * 1024
    e(f"    s_mul_i32 s{s_tmp}, s{s_w}, {wstride}")
    e(f"    s_lshl_b32 s3, s2, 19")
    e(f"    s_add_u32 s3, s3, s{s_tmp}")
    if rot:
        e(f"    s_mul_i32 s{s_rot}, s2, {rot}")
    e(f"    s_mov_b32 s{s_K+2}, 0x{span - (0 if G == 0 else 0):x}")
    if G != 0:
        e(f"    s_sub_u32 s{s_K+2}, s{s_K+2}, s{s_tmp}")
    e(f"    s_mov_b32 s{s_K+3}, 0x20000")
    e(f"    s_mov_b32 s{s_V+2}, s{s_K+2}")
    e(f"    s_mov_b32 s{s_V+3}, 0x20000")
    e(f"    s_mov_b32 s{s_Q+2}, 1024")
    e(f"    s_mov_b32 s{s_Q+3}, 0x20000")
    e(f"    s_lshl_b32 s{s_tmp}, s2, 10")
    e("    s_waitcnt lgkmcnt(0)")
    e(f"    s_add_u32 s{s_Q}, s4, s{s_tmp}")
    e(f"    s_addc_u32 s{s_Q+1}, s5, 0")
    e(f"    s_add_u32 s{s_K}, s6, s3")
    e(f"    s_addc_u32 s{s_K+1}, s7, 0")
    e(f"    buffer_load_dwordx4 v[{v_Q}:{v_Q+3}], v{v_offK}, s[{s_Q}:{s_Q+3}], 0 offen")
    vm_issue("Q")
    e(f"    s_add_u32 s{s_V}, s8, s3")
    e(f"    s_addc_u32 s{s_V+1}, s9, 0")
    total = 2 * NL
    nxt = 0
    while nxt < min(R, total):
        load(nxt); nxt += 1
    e(f"    s_add_u32 s{s_O}, s16, s{s_tmp}")
    e(f"    s_addc_u32 s{s_O+1}, s17, 0")
    e(f"    s_mov_b32 s{s_O+2}, 1024")
    e(f"    s_mov_b32 s{s_O+3}, 0x20000")
    e(f"    s_lshl_b32 s{s_tmp}, s2, 8")
    e(f"    s_add_u32 s{s_KT}, s10, s{s_tmp}")
    e(f"    s_addc_u32 s{s_KT+1}, s11, 0")
    e(f"    s_mov_b32 s{s_KT+2}, 256")
    e(f"    s_mov_b32 s{s_KT+3}, 0x20000")
    e(f"    s_add_u32 s{s_VT}, s12, s{s_tmp}")
    e(f"    s_addc_u32 s{s_VT+1}, s13, 0")
    e(f"    s_mov_b32 s{s_VT+2}, 256")
    e(f"    s_mov_b32 s{s_VT+3}, 0x20000")
    e(f"    buffer_load_dwordx4 v[{v_KT}:{v_KT+3}], v{v_offK}, s[{s_KT}:{s_KT+3}], 0 offen")
    vm_issue("KT")
    e(f"    v_and_b32 v{v_t0}, 0xf0, v{v_offV}")
    e(f"    buffer_load_dwordx4 v[{v_VT}:{v_VT+3}], v{v_t0}, s[{s_VT}:{s_VT+3}], 0 offen")
    vm_issue("VT")
    e(f"    s_lshr_b32 s{s_tmp}, s2, 4")
    e(f"    s_lshl_b32 s{s_tmp}, s{s_tmp}, 2")
    e(f"    s_load_dword s{s_mask}, s[14:15], s{s_tmp}")
    e(f"    s_mov_b32 s{s_c}, 0x3e0293ee")
    out[-1] = f"    s_mov_b32 s{s_c}, 0x{f2u(128**-0.5 * 1.4426950408889634):08x}"
    for sm, val in ((s_M1, 0x22222222), (s_M2, 0x44444444), (s_M3, 0x88888888)):
        e(f"    s_mov_b32 s{sm}, 0x{val:x}")
        e(f"    s_mov_b32 s{sm+1}, 0x{val:x}")
    e(f"    v_mov_b32 v{v_t0}, 0xffff")
    e(f"    v_mov_b32 v{v_t1}, 0xffff0000")
    e(f"    v_cndmask_b32 v{v_m0}, v{v_t0}, v{v_t1}, s[{s_M1}:{s_M1+1}]")
    e(f"    v_cndmask_b32 v{v_m0}, v{v_m0}, 0, s[{s_M2}:{s_M2+1}]")
    e(f"    v_cndmask_b32 v{v_m0}, v{v_m0}, 0, s[{s_M3}:{s_M3+1}]")
    e(f"    v_cndmask_b32 v{v_m1}, 0, v{v_t0}, s[{s_M2}:{s_M2+1}]")
    e(f"    v_cndmask_b32 v{v_m1}, v{v_m1}, v{v_t1}, s[{s_M3}:{s_M3+1}]")
    for k in range(8):
        e(f"    v_mov_b32 v{v_acc+k}, 0")
    e(f"    v_mov_b32 v{v_max}, 0xff7fffff")

    def D(m, r): return v_D + 4 * m + r
    for n in range(NG):
        for qq in range(4):
            i = 4 * n + qq
            vm_wait(("L", i))
            if stamps and i == 0:
                e("    s_memrealtime s[62:63]")
            slot = v_ring + 4 * (i % R)
            e(f"    v_mfma_f32_16x16x32_bf16 v[{D(qq,0)}:{D(qq,3)}], v[{slot}:{slot+3}], v[{v_Q}:{v_Q+3}], 0")
            if nxt < total:
                load(nxt); nxt += 1
        e("    s_nop 7")
        X = [v_t0, v_t1, v_t2, v_t3]
        for s in range(4):
            e(f"    v_cndmask_b32 v{X[s]}, v{D(s,0)}, v{D((s+1)&3,1)}, s[{s_M1}:{s_M1+1}]")
        for s in range(4):
            e(f"    v_cndmask_b32 v{X[s]}, v{X[s]}, v{D((s+2)&3,2)}, s[{s_M2}:{s_M2+1}]")
        for s in (2, 3, 0, 1):
            e(f"    v_cndmask_b32 v{X[s]}, v{X[s]}, v{D((s+3)&3,3)}, s[{s_M3}:{s_M3+1}]")
        e(f"    v_add_f32_dpp v{X[2]}, v{X[3]}, v{X[2]} quad_perm:[3,0,1,2] row_mask:0xf bank_mask:0xf")
        e(f"    s_nop 0")
        e(f"    v_add_f32_dpp v{X[0]}, v{X[1]}, v{X[0]} quad_perm:[3,0,1,2] row_mask:0xf bank_mask:0xf")
        e(f"    s_nop 1")
        e(f"    v_add_f32_dpp v{v_S+n}, v{X[2]}, v{X[0]} quad_perm:[2,3,0,1] row_mask:0xf bank_mask:0xf")
        e(f"    v_max_f32 v{v_max}, v{v_max}, v{v_S+n}")
        if n == min(NG - 1, (R + 3) // 4):
            vm_wait("KT")
            e(f"    v_mfma_f32_16x16x32_bf16 v[{D(0,0)}:{D(0,3)}], v[{v_KT}:{v_KT+3}], v[{v_Q}:{v_Q+3}], 0")
            e("    s_waitcnt lgkmcnt(0)")
            e(f"    s_bitcmp1_b32 s2, 3")
            e(f"    s_cselect_b32 s{s_tmp}, 0, 16")
            e(f"    s_lshl_b32 s{s_mask}, s{s_mask}, s{s_tmp}")
            e(f"    s_and_b32 s{s_mask}, s{s_mask}, 0xffff0000")
            e("    s_nop 4")
            e(f"    v_cndmask_b32 v{v_t0}, v{D(0,0)}, v{D(0,1)}, s[{s_M1}:{s_M1+1}]")
            e(f"    v_cndmask_b32 v{v_t0}, v{v_t0}, v{D(0,2)}, s[{s_M2}:{s_M2+1}]")
            e(f"    v_cndmask_b32 v{v_t0}, v{v_t0}, v{D(0,3)}, s[{s_M3}:{s_M3+1}]")
            e(f"    v_mov_b32 v{v_t1}, s{s_mask}")
            e(f"    v_sub_f32 v{v_t1}, 1.0, v{v_t1}")
            e(f"    v_add_f32_dpp v{v_t0}, v{v_t0}, v{v_t0} quad_perm:[1,0,3,2] row_mask:0xf bank_mask:0xf")
            e(f"    v_mul_f32 v{v_t1}, 0x{f2u(-1e9*1.4426950408889634):08x}, v{v_t1}")
            e(f"    s_nop 0")
            e(f"    v_add_f32_dpp v{v_t0}, v{v_t0}, v{v_t0} quad_perm:[2,3,0,1] row_mask:0xf bank_mask:0xf")
            e(f"    s_nop 0")
            e(f"    v_fma_f32 v{v_KT}, v{v_t0}, s{s_c}, v{v_t1}")
            e(f"    v_mov_b32 v{v_KT+1}, 1.0")
    e("    s_nop 1")
    e(f"    v_max_f32_dpp v{v_max}, v{v_max}, v{v_max} quad_perm:[1,0,3,2] row_mask:0xf bank_mask:0xf")
    e("    s_nop 1")
    e(f"    v_max_f32_dpp v{v_max}, v{v_max}, v{v_max} quad_perm:[2,3,0,1] row_mask:0xf bank_mask:0xf")
    e("    s_nop 0")
    e(f"    v_mov_b32 v{v_t0}, v{v_max}")
    e("    s_nop 1")
    e(f"    v_permlane16_swap_b32 v{v_t0}, v{v_max}")
    e("    s_nop 1")
    e(f"    v_max_f32 v{v_max}, v{v_max}, v{v_t0}")
    e("    s_nop 0")
    e(f"    v_mov_b32 v{v_t0}, v{v_max}")
    e("    s_nop 1")
    e(f"    v_permlane32_swap_b32 v{v_t0}, v{v_max}")
    e("    s_nop 1")
    e(f"    v_max_f32 v{v_max}, v{v_max}, v{v_t0}")
    e(f"    v_mul_f32 v{v_max}, s{s_c}, v{v_max}")
    for n in range(NG):
        e(f"    v_fma_f32 v{v_S+n}, v{v_S+n}, s{s_c}, -v{v_max}")
    for n in range(NG):
        e(f"    v_exp_f32 v{v_S+n}, v{v_S+n}")
    e("    s_nop 0")
    e(f"    v_mov_b32 v{v_sum}, v{v_S}")
    for n in range(1, NG):
        e(f"    v_add_f32 v{v_sum}, v{v_sum}, v{v_S+n}")
    for n in range(NG):
        e(f"    v_cvt_pk_bf16_f32 v{v_S+n}, v{v_S+n}, v{v_S+n}")
    e(f"    v_add_f32_dpp v{v_sum}, v{v_sum}, v{v_sum} quad_perm:[1,0,3,2] row_mask:0xf bank_mask:0xf")
    e("    s_nop 1")
    e(f"    v_add_f32_dpp v{v_sum}, v{v_sum}, v{v_sum} quad_perm:[2,3,0,1] row_mask:0xf bank_mask:0xf")
    e("    s_nop 0")
    e(f"    v_mov_b32 v{v_t0}, v{v_sum}")
    e("    s_nop 1")
    e(f"    v_permlane16_swap_b32 v{v_t0}, v{v_sum}")
    e("    s_nop 1")
    e(f"    v_add_f32 v{v_sum}, v{v_sum}, v{v_t0}")
    e("    s_nop 0")
    e(f"    v_mov_b32 v{v_t0}, v{v_sum}")
    e("    s_nop 1")
    e(f"    v_permlane32_swap_b32 v{v_t0}, v{v_sum}")
    e("    s_nop 1")
    e(f"    v_add_f32 v{v_sum}, v{v_sum}, v{v_t0}")
    assert v_sum == v_max + 1 and v_max % 2 == 0
    e(f"    v_and_b32 v{v_t0}, 12, v{v_lane}")
    e(f"    v_lshlrev_b32 v{v_t0}, 1, v{v_t0}")
    e(f"    s_lshl_b32 s{s_tmp}, s{s_w}, 5")
    e(f"    v_add_u32 v{v_t1}, s{s_tmp}, v{v_t0}")
    e(f"    s_mov_b64 exec, 0x1111")
    e(f"    ds_write_b64 v{v_t1}, v[{v_max}:{v_max+1}] offset:{lds_ml}")
    e(f"    s_cmp_lg_u32 s{s_w}, 0")
    e(f"    s_cbranch_scc1 L_notree")
    e(f"    ds_write_b64 v{v_t0}, v[{v_KT}:{v_KT+1}] offset:{lds_ml + W*32}")
    e("L_notree:")
    e(f"    s_mov_b64 exec, -1")
    for j in range(NL):
        i = NL + j
        n, qq = j // 4, j % 4
        A = v_A + 2 * (j & 1)
        e(f"    v_and_b32_dpp v{A}, v{v_S+n}, v{v_m0} quad_perm:[{qq},{qq},{qq},{qq}] row_mask:0xf bank_mask:0xf")
        e(f"    v_and_b32_dpp v{A+1}, v{v_S+n}, v{v_m1} quad_perm:[{qq},{qq},{qq},{qq}] row_mask:0xf bank_mask:0xf")
        e("    s_nop 0" if ("L", i) in q else "    s_nop 1")
        vm_wait(("L", i))
        slot = v_ring + 4 * (i % R)
        e(f"    v_mfma_f32_16x16x16_bf16 v[{v_acc}:{v_acc+3}], v[{A}:{A+1}], v[{slot}:{slot+1}], v[{v_acc}:{v_acc+3}]")
        e(f"    v_mfma_f32_16x16x16_bf16 v[{v_acc+4}:{v_acc+7}], v[{A}:{A+1}], v[{slot+2}:{slot+3}], v[{v_acc+4}:{v_acc+7}]")
        if nxt < total:
            load(nxt); nxt += 1
    vm_wait("VT")
    if stamps:
        e("    s_memrealtime s[64:65]")
    e(f"    s_lshl_b32 s{s_tmp}, s{s_w}, 11")
    e(f"    v_add_u32 v{v_t0}, s{s_tmp}, v{v_offV}")
    e("    s_nop 6")
    e(f"    ds_write_b128 v{v_t0}, v[{v_acc}:{v_acc+3}]")
    e(f"    ds_write_b128 v{v_t0}, v[{v_acc+4}:{v_acc+7}] offset:1024")
    e("    s_waitcnt lgkmcnt(0)")
    e("    s_barrier")
    e(f"    s_cmp_lg_u32 s{s_w}, 0")
    e(f"    s_cbranch_scc1 L_fin")
    vml = v_D
    vo = (vml + 2 * (W + 1) + 3) // 4 * 4
    NB = min(W, (nv - vo) // 8)
    assert NB >= 2
    e(f"    v_lshrrev_b32 v{v_t0}, 4, v{v_lane}")
    e(f"    v_lshlrev_b32 v{v_t0}, 3, v{v_t0}")
    lq = []
    def lds_wait(tag):
        if tag not in lq: return
        idx = lq.index(tag); n = len(lq) - 1 - idx
        e(f"    s_waitcnt lgkmcnt({min(15, n)})")
        del lq[:idx + 1]
    for w in range(W + 1):
        e(f"    ds_read_b64 v[{vml+2*w}:{vml+2*w+1}], v{v_t0} offset:{lds_ml + w*32}")
        lq.append(("ml", w))
    def rdO(w):
        bb = vo + 8 * (w % NB)
        e(f"    ds_read_b128 v[{bb}:{bb+3}], v{v_offV} offset:{w*2048}")
        lq.append(("o0", w))
        e(f"    ds_read_b128 v[{bb+4}:{bb+7}], v{v_offV} offset:{w*2048+1024}")
        lq.append(("o1", w))
    for w in range(NB):
        rdO(w)
    lds_wait(("ml", W))
    e(f"    v_max_f32 v{v_max}, v{vml}, v{vml+2}")
    for w in range(2, W + 1):
        e(f"    v_max_f32 v{v_max}, v{v_max}, v{vml+2*w}")
    for w in range(W + 1):
        e(f"    v_sub_f32 v{vml+2*w}, v{vml+2*w}, v{v_max}")
    for w in range(W + 1):
        e(f"    v_exp_f32 v{vml+2*w}, v{vml+2*w}")
    e("    s_nop 0")
    e(f"    v_mul_f32 v{v_sum}, v{vml}, v{vml+1}")
    for w in range(1, W + 1):
        e(f"    v_fmac_f32 v{v_sum}, v{vml+2*w}, v{vml+2*w+1}")
    e(f"    v_rcp_f32 v{v_sum}, v{v_sum}")
    fT = vml + 2 * W
    for k in range(4):
        e(f"    v_lshlrev_b32 v{v_acc+2*k}, 16, v{v_VT+k}")
        e(f"    v_and_b32 v{v_acc+2*k+1}, 0xffff0000, v{v_VT+k}")
    for k in range(8):
        e(f"    v_mul_f32 v{v_acc+k}, v{fT}, v{v_acc+k}")
    for w in range(W):
        lds_wait(("o1", w))
        bb = vo + 8 * (w % NB)
        for k in range(8):
            e(f"    v_fmac_f32 v{v_acc+k}, v{vml+2*w}, v{bb+k}")
        if w + NB < W:
            rdO(w + NB)
    for k in range(8):
        e(f"    v_mul_f32 v{v_acc+k}, v{v_sum}, v{v_acc+k}")
    for k in range(4):
        e(f"    v_cvt_pk_bf16_f32 v{v_t0+k}, v{v_acc+2*k}, v{v_acc+2*k+1}")
    e(f"    buffer_store_dwordx4 v[{v_t0}:{v_t0+3}], v{v_offV}, s[{s_O}:{s_O+3}], 0 offen")
    e("L_fin:")
    if stamps:
        e("    s_memrealtime s[66:67]")
        e("    s_waitcnt lgkmcnt(0)")
        e(f"    s_mul_i32 s{s_tmp}, s2, {W}")
        e(f"    s_add_u32 s{s_tmp}, s{s_tmp}, s{s_w}")
        e(f"    s_lshl_b32 s{s_tmp}, s{s_tmp}, 6")
        e(f"    s_add_u32 s72, s68, s{s_tmp}")
        e(f"    s_addc_u32 s73, s69, 0")
        e(f"    s_mov_b32 s74, 64")
        e(f"    s_mov_b32 s75, 0x20000")
        e(f"    s_getreg_b32 s70, hwreg(HW_REG_XCC_ID)")
        e(f"    s_getreg_b32 s71, hwreg(HW_REG_HW_ID)")
        for k in range(8):
            e(f"    v_mov_b32 v{v_D+k}, s{60+k}")
        e(f"    v_mov_b32 v{v_D+8}, s70")
        e(f"    v_mov_b32 v{v_D+9}, s71")
        e(f"    v_mov_b32 v{v_t0}, 0")
        e(f"    s_mov_b64 exec, 1")
        e(f"    buffer_store_dwordx4 v[{v_D}:{v_D+3}], v{v_t0}, s[72:75], 0 offen")
        e(f"    buffer_store_dwordx4 v[{v_D+4}:{v_D+7}], v{v_t0}, s[72:75], 0 offen offset:16")
        e(f"    buffer_store_dwordx2 v[{v_D+8}:{v_D+9}], v{v_t0}, s[72:75], 0 offen offset:32")
    e("L_end:")
    e("    s_endpgm")
    e('.section .rodata,"a"')
    e(".p2align 6")
    e(f".amdhsa_kernel {kname}")
    nvv = min(nv, 512)
    e(f"  .amdhsa_next_free_vgpr {nvv}")
    e("  .amdhsa_next_free_sgpr 96")
    e(f"  .amdhsa_accum_offset {min(256, (nvv+3)//4*4)}")
    e("  .amdhsa_group_segment_fixed_size 0")
    e("  .amdhsa_kernarg_size 72")
    e("  .amdhsa_user_sgpr_count 2")
    e("  .amdhsa_user_sgpr_kernarg_segment_ptr 1")
    e("  .amdhsa_system_sgpr_workgroup_id_x 1")
    e(".end_amdhsa_kernel")
    return "\n".join(x for x in out if x is not None) + "\n"

import struct
def f2u(x): return struct.unpack("<I", struct.pack("<f", x))[0]

if __name__ == "__main__":
    ap = argparse.ArgumentParser()
    ap.add_argument("-W", type=int, default=8)
    ap.add_argument("-R", type=int, default=32)
    ap.add_argument("--flags", default="nt")
    ap.add_argument("-G", type=int, default=0)
    ap.add_argument("--rot", type=int, default=0)
    ap.add_argument("--lds", type=int, default=0)
    ap.add_argument("--stamps", action="store_true")
    ap.add_argument("-o", default="/dev/stdout")
    a = ap.parse_args()
    open(a.o, "w").write(gen(a.W, a.R, a.flags, a.G, a.rot, a.lds, a.stamps))
```

```python
import sys, argparse

NAME = "standalone__tree_speculative_verify_tree_attention_over_candidate_token_tree__sampling"
HEADER = open("cdna_kernels/%s.s.ref" % NAME).read().split("; Override launch")[0]

def gen(W=8, R=32, flags="nt", vflags=None, G=0, rot=0, lds_min=0, stamps=False, name=None):
    kname = (name or NAME) + "_kernel"
    NK = 2048 // W
    NL = NK // 4
    NG = NL // 4
    out = []
    e = out.append
    v_lane = 1; v_offK = 2; v_offV = 3; v_m0 = 4; v_m1 = 5
    v_max = 6; v_sum = 7; v_t0 = 8; v_t1 = 9; v_t2 = 10; v_t3 = 11
    v_Q = 12
    v_KT = 16
    v_VT = 20
    v_A = 24
    v_acc = 28
    v_D = 36
    v_S = 52
    v_ring = (v_S + NG + 3) // 4 * 4
    nv = v_ring + 4 * R
    assert nv <= 512
    s_w = 20; s_off = 21; s_c = 22; s_mask = 23
    s_M1 = 24; s_M2 = 26; s_M3 = 28
    s_K = 32; s_V = 36; s_Q = 40; s_KT = 44; s_VT = 48; s_O = 52
    s_rot = 56; s_tmp = 57
    lds_ml = W * 2048
    lds_size = max(lds_ml + (W + 1) * 32, lds_min)

    q = []
    def vm_issue(tag): q.append(tag)
    def vm_wait(tag):
        if tag not in q: return
        idx = q.index(tag)
        n = len(q) - 1 - idx
        assert n <= 63
        e(f"    s_waitcnt vmcnt({n})")
        del q[:idx + 1]

    def off(i):
        if G == 0: return i * 1024
        return (i // G) * (W * G * 1024) + (i % G) * 1024
    span = NK * 256 if G == 0 else 2048 * 256

    cur_soff = [None]
    def load(i):
        isV = i >= NL
        j = i - NL if isV else i
        o = off(j)
        hi, lo = o & ~4095, o & 4095
        key = (hi,)
        if cur_soff[0] != key:
            if rot:
                e(f"    s_add_u32 s{s_off}, s{s_rot}, 0x{hi:x}")
                e(f"    s_and_b32 s{s_off}, s{s_off}, 0x{span-1:x}")
            else:
                e(f"    s_mov_b32 s{s_off}, 0x{hi:x}")
            cur_soff[0] = key
        slot = v_ring + 4 * (i % R)
        srd = s_V if isV else s_K
        vo = v_offV if isV else v_offK
        e(f"    buffer_load_dwordx4 v[{slot}:{slot+3}], v{vo}, s[{srd}:{srd+3}], s{s_off} offen offset:{lo} {(vflags if (isV and vflags is not None) else flags)}")
        vm_issue(("L", i))

    e(HEADER.rstrip())
    e("; Override launch geometry by editing the next line (default: block=256,")
    e(f"; @launch grid=(256,1,1) block=({W*64},1,1) lds={lds_size}")
    e('.amdgcn_target "amdgcn-amd-amdhsa--gfx950"')
    e(".text")
    e(f".globl {kname}")
    e(".p2align 8")
    e(f".type {kname},@function")
    e(f"{kname}:")
    e("    s_cmp_ge_u32 s2, 256")
    e("    s_cbranch_scc1 L_end")
    e("    s_load_dwordx16 s[4:19], s[0:1], 0")
    if stamps:
        e("    s_memrealtime s[60:61]")
        e("    s_load_dwordx2 s[68:69], s[0:1], 64")
    e(f"    v_lshrrev_b32 v{v_t0}, 6, v0")
    e(f"    v_and_b32 v{v_lane}, 63, v0")
    e(f"    v_readfirstlane_b32 s{s_w}, v{v_t0}")
    e(f"    v_lshlrev_b32 v{v_offV}, 4, v{v_lane}")
    e(f"    v_and_b32 v{v_t0}, 12, v{v_lane}")
    e(f"    v_lshlrev_b32 v{v_t0}, 6, v{v_t0}")
    e(f"    v_and_b32 v{v_t1}, 48, v{v_lane}")
    e(f"    v_lshlrev_b32 v{v_t1}, 2, v{v_t1}")
    e(f"    v_and_b32 v{v_t2}, 48, v{v_offV}")
    e(f"    v_or3_b32 v{v_offK}, v{v_t0}, v{v_t1}, v{v_t2}")
    wstride = NK * 256 if G == 0 else G * 1024
    e(f"    s_mul_i32 s{s_tmp}, s{s_w}, {wstride}")
    e(f"    s_lshl_b32 s3, s2, 19")
    e(f"    s_add_u32 s3, s3, s{s_tmp}")
    if rot:
        e(f"    s_mul_i32 s{s_rot}, s2, {rot}")
    e(f"    s_mov_b32 s{s_K+2}, 0x{span - (0 if G == 0 else 0):x}")
    if G != 0:
        e(f"    s_sub_u32 s{s_K+2}, s{s_K+2}, s{s_tmp}")
    e(f"    s_mov_b32 s{s_K+3}, 0x20000")
    e(f"    s_mov_b32 s{s_V+2}, s{s_K+2}")
    e(f"    s_mov_b32 s{s_V+3}, 0x20000")
    e(f"    s_mov_b32 s{s_Q+2}, 1024")
    e(f"    s_mov_b32 s{s_Q+3}, 0x20000")
    e(f"    s_lshl_b32 s{s_tmp}, s2, 10")
    e("    s_waitcnt lgkmcnt(0)")
    e(f"    s_add_u32 s{s_Q}, s4, s{s_tmp}")
    e(f"    s_addc_u32 s{s_Q+1}, s5, 0")
    e(f"    s_add_u32 s{s_K}, s6, s3")
    e(f"    s_addc_u32 s{s_K+1}, s7, 0")
    e(f"    buffer_load_dwordx4 v[{v_Q}:{v_Q+3}], v{v_offK}, s[{s_Q}:{s_Q+3}], 0 offen")
    vm_issue("Q")
    e(f"    s_add_u32 s{s_V}, s8, s3")
    e(f"    s_addc_u32 s{s_V+1}, s9, 0")
    total = 2 * NL
    nxt = 0
    while nxt < min(R, total):
        load(nxt); nxt += 1
    e(f"    s_add_u32 s{s_O}, s16, s{s_tmp}")
    e(f"    s_addc_u32 s{s_O+1}, s17, 0")
    e(f"    s_mov_b32 s{s_O+2}, 1024")
    e(f"    s_mov_b32 s{s_O+3}, 0x20000")
    e(f"    s_lshl_b32 s{s_tmp}, s2, 8")
    e(f"    s_add_u32 s{s_KT}, s10, s{s_tmp}")
    e(f"    s_addc_u32 s{s_KT+1}, s11, 0")
    e(f"    s_mov_b32 s{s_KT+2}, 256")
    e(f"    s_mov_b32 s{s_KT+3}, 0x20000")
    e(f"    s_add_u32 s{s_VT}, s12, s{s_tmp}")
    e(f"    s_addc_u32 s{s_VT+1}, s13, 0")
    e(f"    s_mov_b32 s{s_VT+2}, 256")
    e(f"    s_mov_b32 s{s_VT+3}, 0x20000")
    e(f"    buffer_load_dwordx4 v[{v_KT}:{v_KT+3}], v{v_offK}, s[{s_KT}:{s_KT+3}], 0 offen")
    vm_issue("KT")
    e(f"    v_and_b32 v{v_t0}, 0xf0, v{v_offV}")
    e(f"    buffer_load_dwordx4 v[{v_VT}:{v_VT+3}], v{v_t0}, s[{s_VT}:{s_VT+3}], 0 offen")
    vm_issue("VT")
    e(f"    s_lshr_b32 s{s_tmp}, s2, 4")
    e(f"    s_lshl_b32 s{s_tmp}, s{s_tmp}, 2")
    e(f"    s_load_dword s{s_mask}, s[14:15], s{s_tmp}")
    e(f"    s_mov_b32 s{s_c}, 0x3e0293ee")
    out[-1] = f"    s_mov_b32 s{s_c}, 0x{f2u(128**-0.5 * 1.4426950408889634):08x}"
    for sm, val in ((s_M1, 0x22222222), (s_M2, 0x44444444), (s_M3, 0x88888888)):
        e(f"    s_mov_b32 s{sm}, 0x{val:x}")
        e(f"    s_mov_b32 s{sm+1}, 0x{val:x}")
    e(f"    v_mov_b32 v{v_t0}, 0xffff")
    e(f"    v_mov_b32 v{v_t1}, 0xffff0000")
    e(f"    v_cndmask_b32 v{v_m0}, v{v_t0}, v{v_t1}, s[{s_M1}:{s_M1+1}]")
    e(f"    v_cndmask_b32 v{v_m0}, v{v_m0}, 0, s[{s_M2}:{s_M2+1}]")
    e(f"    v_cndmask_b32 v{v_m0}, v{v_m0}, 0, s[{s_M3}:{s_M3+1}]")
    e(f"    v_cndmask_b32 v{v_m1}, 0, v{v_t0}, s[{s_M2}:{s_M2+1}]")
    e(f"    v_cndmask_b32 v{v_m1}, v{v_m1}, v{v_t1}, s[{s_M3}:{s_M3+1}]")
    for k in range(8):
        e(f"    v_mov_b32 v{v_acc+k}, 0")
    e(f"    v_mov_b32 v{v_max}, 0xff7fffff")

    def D(m, r): return v_D + 4 * m + r
    for n in range(NG):
        for qq in range(4):
            i = 4 * n + qq
            vm_wait(("L", i))
            if stamps and i == 0:
                e("    s_memrealtime s[62:63]")
            slot = v_ring + 4 * (i % R)
            e(f"    v_mfma_f32_16x16x32_bf16 v[{D(qq,0)}:{D(qq,3)}], v[{slot}:{slot+3}], v[{v_Q}:{v_Q+3}], 0")
            if nxt < total:
                load(nxt); nxt += 1
        e("    s_nop 7")
        X = [v_t0, v_t1, v_t2, v_t3]
        for s in range(4):
            e(f"    v_cndmask_b32 v{X[s]}, v{D(s,0)}, v{D((s+1)&3,1)}, s[{s_M1}:{s_M1+1}]")
        for s in range(4):
            e(f"    v_cndmask_b32 v{X[s]}, v{X[s]}, v{D((s+2)&3,2)}, s[{s_M2}:{s_M2+1}]")
        for s in (2, 3, 0, 1):
            e(f"    v_cndmask_b32 v{X[s]}, v{X[s]}, v{D((s+3)&3,3)}, s[{s_M3}:{s_M3+1}]")
        e(f"    v_add_f32_dpp v{X[2]}, v{X[3]}, v{X[2]} quad_perm:[3,0,1,2] row_mask:0xf bank_mask:0xf")
        e(f"    s_nop 0")
        e(f"    v_add_f32_dpp v{X[0]}, v{X[1]}, v{X[0]} quad_perm:[3,0,1,2] row_mask:0xf bank_mask:0xf")
        e(f"    s_nop 1")
        e(f"    v_add_f32_dpp v{v_S+n}, v{X[2]}, v{X[0]} quad_perm:[2,3,0,1] row_mask:0xf bank_mask:0xf")
        e(f"    v_max_f32 v{v_max}, v{v_max}, v{v_S+n}")
        if n == min(NG - 1, (R + 3) // 4):
            vm_wait("KT")
            e(f"    v_mfma_f32_16x16x32_bf16 v[{D(0,0)}:{D(0,3)}], v[{v_KT}:{v_KT+3}], v[{v_Q}:{v_Q+3}], 0")
            e("    s_waitcnt lgkmcnt(0)")
            e(f"    s_bitcmp1_b32 s2, 3")
            e(f"    s_cselect_b32 s{s_tmp}, 0, 16")
            e(f"    s_lshl_b32 s{s_mask}, s{s_mask}, s{s_tmp}")
            e(f"    s_and_b32 s{s_mask}, s{s_mask}, 0xffff0000")
            e("    s_nop 4")
            e(f"    v_cndmask_b32 v{v_t0}, v{D(0,0)}, v{D(0,1)}, s[{s_M1}:{s_M1+1}]")
            e(f"    v_cndmask_b32 v{v_t0}, v{v_t0}, v{D(0,2)}, s[{s_M2}:{s_M2+1}]")
            e(f"    v_cndmask_b32 v{v_t0}, v{v_t0}, v{D(0,3)}, s[{s_M3}:{s_M3+1}]")
            e(f"    v_mov_b32 v{v_t1}, s{s_mask}")
            e(f"    v_sub_f32 v{v_t1}, 1.0, v{v_t1}")
            e(f"    v_add_f32_dpp v{v_t0}, v{v_t0}, v{v_t0} quad_perm:[1,0,3,2] row_mask:0xf bank_mask:0xf")
            e(f"    v_mul_f32 v{v_t1}, 0x{f2u(-1e9*1.4426950408889634):08x}, v{v_t1}")
            e(f"    s_nop 0")
            e(f"    v_add_f32_dpp v{v_t0}, v{v_t0}, v{v_t0} quad_perm:[2,3,0,1] row_mask:0xf bank_mask:0xf")
            e(f"    s_nop 0")
            e(f"    v_fma_f32 v{v_KT}, v{v_t0}, s{s_c}, v{v_t1}")
            e(f"    v_mov_b32 v{v_KT+1}, 1.0")
    e("    s_nop 1")
    e(f"    v_max_f32_dpp v{v_max}, v{v_max}, v{v_max} quad_perm:[1,0,3,2] row_mask:0xf bank_mask:0xf")
    e("    s_nop 1")
    e(f"    v_max_f32_dpp v{v_max}, v{v_max}, v{v_max} quad_perm:[2,3,0,1] row_mask:0xf bank_mask:0xf")
    e("    s_nop 0")
    e(f"    v_mov_b32 v{v_t0}, v{v_max}")
    e("    s_nop 1")
    e(f"    v_permlane16_swap_b32 v{v_t0}, v{v_max}")
    e("    s_nop 1")
    e(f"    v_max_f32 v{v_max}, v{v_max}, v{v_t0}")
    e("    s_nop 0")
    e(f"    v_mov_b32 v{v_t0}, v{v_max}")
    e("    s_nop 1")
    e(f"    v_permlane32_swap_b32 v{v_t0}, v{v_max}")
    e("    s_nop 1")
    e(f"    v_max_f32 v{v_max}, v{v_max}, v{v_t0}")
    e(f"    v_mul_f32 v{v_max}, s{s_c}, v{v_max}")
    for n in range(NG):
        e(f"    v_fma_f32 v{v_S+n}, v{v_S+n}, s{s_c}, -v{v_max}")
    for n in range(NG):
        e(f"    v_exp_f32 v{v_S+n}, v{v_S+n}")
    e("    s_nop 0")
    e(f"    v_mov_b32 v{v_sum}, v{v_S}")
    for n in range(1, NG):
        e(f"    v_add_f32 v{v_sum}, v{v_sum}, v{v_S+n}")
    for n in range(NG):
        e(f"    v_cvt_pk_bf16_f32 v{v_S+n}, v{v_S+n}, v{v_S+n}")
    e(f"    v_add_f32_dpp v{v_sum}, v{v_sum}, v{v_sum} quad_perm:[1,0,3,2] row_mask:0xf bank_mask:0xf")
    e("    s_nop 1")
    e(f"    v_add_f32_dpp v{v_sum}, v{v_sum}, v{v_sum} quad_perm:[2,3,0,1] row_mask:0xf bank_mask:0xf")
    e("    s_nop 0")
    e(f"    v_mov_b32 v{v_t0}, v{v_sum}")
    e("    s_nop 1")
    e(f"    v_permlane16_swap_b32 v{v_t0}, v{v_sum}")
    e("    s_nop 1")
    e(f"    v_add_f32 v{v_sum}, v{v_sum}, v{v_t0}")
    e("    s_nop 0")
    e(f"    v_mov_b32 v{v_t0}, v{v_sum}")
    e("    s_nop 1")
    e(f"    v_permlane32_swap_b32 v{v_t0}, v{v_sum}")
    e("    s_nop 1")
    e(f"    v_add_f32 v{v_sum}, v{v_sum}, v{v_t0}")
    assert v_sum == v_max + 1 and v_max % 2 == 0
    e(f"    v_and_b32 v{v_t0}, 12, v{v_lane}")
    e(f"    v_lshlrev_b32 v{v_t0}, 1, v{v_t0}")
    e(f"    s_lshl_b32 s{s_tmp}, s{s_w}, 5")
    e(f"    v_add_u32 v{v_t1}, s{s_tmp}, v{v_t0}")
    e(f"    s_mov_b64 exec, 0x1111")
    e(f"    ds_write_b64 v{v_t1}, v[{v_max}:{v_max+1}] offset:{lds_ml}")
    e(f"    s_cmp_lg_u32 s{s_w}, 0")
    e(f"    s_cbranch_scc1 L_notree")
    e(f"    ds_write_b64 v{v_t0}, v[{v_KT}:{v_KT+1}] offset:{lds_ml + W*32}")
    e("L_notree:")
    e(f"    s_mov_b64 exec, -1")
    for j in range(NL):
        i = NL + j
        n, qq = j // 4, j % 4
        A = v_A + 2 * (j & 1)
        e(f"    v_and_b32_dpp v{A}, v{v_S+n}, v{v_m0} quad_perm:[{qq},{qq},{qq},{qq}] row_mask:0xf bank_mask:0xf")
        e(f"    v_and_b32_dpp v{A+1}, v{v_S+n}, v{v_m1} quad_perm:[{qq},{qq},{qq},{qq}] row_mask:0xf bank_mask:0xf")
        e("    s_nop 0" if ("L", i) in q else "    s_nop 1")
        vm_wait(("L", i))
        slot = v_ring + 4 * (i % R)
        e(f"    v_mfma_f32_16x16x16_bf16 v[{v_acc}:{v_acc+3}], v[{A}:{A+1}], v[{slot}:{slot+1}], v[{v_acc}:{v_acc+3}]")
        e(f"    v_mfma_f32_16x16x16_bf16 v[{v_acc+4}:{v_acc+7}], v[{A}:{A+1}], v[{slot+2}:{slot+3}], v[{v_acc+4}:{v_acc+7}]")
        if nxt < total:
            load(nxt); nxt += 1
    vm_wait("VT")
    if stamps:
        e("    s_memrealtime s[64:65]")
    e(f"    s_lshl_b32 s{s_tmp}, s{s_w}, 11")
    e(f"    v_add_u32 v{v_t0}, s{s_tmp}, v{v_offV}")
    e("    s_nop 6")
    e(f"    ds_write_b128 v{v_t0}, v[{v_acc}:{v_acc+3}]")
    e(f"    ds_write_b128 v{v_t0}, v[{v_acc+4}:{v_acc+7}] offset:1024")
    e("    s_waitcnt lgkmcnt(0)")
    e("    s_barrier")
    e(f"    s_cmp_lg_u32 s{s_w}, 0")
    e(f"    s_cbranch_scc1 L_fin")
    vml = v_D
    vo = (vml + 2 * (W + 1) + 3) // 4 * 4
    NB = min(W, (nv - vo) // 8)
    assert NB >= 2
    e(f"    v_lshrrev_b32 v{v_t0}, 4, v{v_lane}")
    e(f"    v_lshlrev_b32 v{v_t0}, 3, v{v_t0}")
    lq = []
    def lds_wait(tag):
        if tag not in lq: return
        idx = lq.index(tag); n = len(lq) - 1 - idx
        e(f"    s_waitcnt lgkmcnt({min(15, n)})")
        del lq[:idx + 1]
    for w in range(W + 1):
        e(f"    ds_read_b64 v[{vml+2*w}:{vml+2*w+1}], v{v_t0} offset:{lds_ml + w*32}")
        lq.append(("ml", w))
    def rdO(w):
        bb = vo + 8 * (w % NB)
        e(f"    ds_read_b128 v[{bb}:{bb+3}], v{v_offV} offset:{w*2048}")
        lq.append(("o0", w))
        e(f"    ds_read_b128 v[{bb+4}:{bb+7}], v{v_offV} offset:{w*2048+1024}")
        lq.append(("o1", w))
    for w in range(NB):
        rdO(w)
    lds_wait(("ml", W))
    e(f"    v_max_f32 v{v_max}, v{vml}, v{vml+2}")
    for w in range(2, W + 1):
        e(f"    v_max_f32 v{v_max}, v{v_max}, v{vml+2*w}")
    for w in range(W + 1):
        e(f"    v_sub_f32 v{vml+2*w}, v{vml+2*w}, v{v_max}")
    for w in range(W + 1):
        e(f"    v_exp_f32 v{vml+2*w}, v{vml+2*w}")
    e("    s_nop 0")
    e(f"    v_mul_f32 v{v_sum}, v{vml}, v{vml+1}")
    for w in range(1, W + 1):
        e(f"    v_fmac_f32 v{v_sum}, v{vml+2*w}, v{vml+2*w+1}")
    e(f"    v_rcp_f32 v{v_sum}, v{v_sum}")
    fT = vml + 2 * W
    for k in range(4):
        e(f"    v_lshlrev_b32 v{v_acc+2*k}, 16, v{v_VT+k}")
        e(f"    v_and_b32 v{v_acc+2*k+1}, 0xffff0000, v{v_VT+k}")
    for k in range(8):
        e(f"    v_mul_f32 v{v_acc+k}, v{fT}, v{v_acc+k}")
    for w in range(W):
        lds_wait(("o1", w))
        bb = vo + 8 * (w % NB)
        for k in range(8):
            e(f"    v_fmac_f32 v{v_acc+k}, v{vml+2*w}, v{bb+k}")
        if w + NB < W:
            rdO(w + NB)
    for k in range(8):
        e(f"    v_mul_f32 v{v_acc+k}, v{v_sum}, v{v_acc+k}")
    for k in range(4):
        e(f"    v_cvt_pk_bf16_f32 v{v_t0+k}, v{v_acc+2*k}, v{v_acc+2*k+1}")
    e(f"    buffer_store_dwordx4 v[{v_t0}:{v_t0+3}], v{v_offV}, s[{s_O}:{s_O+3}], 0 offen")
    e("L_fin:")
    if stamps:
        e("    s_memrealtime s[66:67]")
        e("    s_waitcnt lgkmcnt(0)")
        e(f"    s_mul_i32 s{s_tmp}, s2, {W}")
        e(f"    s_add_u32 s{s_tmp}, s{s_tmp}, s{s_w}")
        e(f"    s_lshl_b32 s{s_tmp}, s{s_tmp}, 6")
        e(f"    s_add_u32 s72, s68, s{s_tmp}")
        e(f"    s_addc_u32 s73, s69, 0")
        e(f"    s_mov_b32 s74, 64")
        e(f"    s_mov_b32 s75, 0x20000")
        e(f"    s_getreg_b32 s70, hwreg(HW_REG_XCC_ID)")
        e(f"    s_getreg_b32 s71, hwreg(HW_REG_HW_ID)")
        for k in range(8):
            e(f"    v_mov_b32 v{v_D+k}, s{60+k}")
        e(f"    v_mov_b32 v{v_D+8}, s70")
        e(f"    v_mov_b32 v{v_D+9}, s71")
        e(f"    v_mov_b32 v{v_t0}, 0")
        e(f"    s_mov_b64 exec, 1")
        e(f"    buffer_store_dwordx4 v[{v_D}:{v_D+3}], v{v_t0}, s[72:75], 0 offen")
        e(f"    buffer_store_dwordx4 v[{v_D+4}:{v_D+7}], v{v_t0}, s[72:75], 0 offen offset:16")
        e(f"    buffer_store_dwordx2 v[{v_D+8}:{v_D+9}], v{v_t0}, s[72:75], 0 offen offset:32")
    e("L_end:")
    e("    s_endpgm")
    e('.section .rodata,"a"')
    e(".p2align 6")
    e(f".amdhsa_kernel {kname}")
    nvv = min(nv, 512)
    e(f"  .amdhsa_next_free_vgpr {nvv}")
    e("  .amdhsa_next_free_sgpr 96")
    e(f"  .amdhsa_accum_offset {min(256, (nvv+3)//4*4)}")
    e("  .amdhsa_group_segment_fixed_size 0")
    e("  .amdhsa_kernarg_size 72")
    e("  .amdhsa_user_sgpr_count 2")
    e("  .amdhsa_user_sgpr_kernarg_segment_ptr 1")
    e("  .amdhsa_system_sgpr_workgroup_id_x 1")
    e(".end_amdhsa_kernel")
    return "\n".join(x for x in out if x is not None) + "\n"

import struct
def f2u(x): return struct.unpack("<I", struct.pack("<f", x))[0]

if __name__ == "__main__":
    ap = argparse.ArgumentParser()
    ap.add_argument("-W", type=int, default=8)
    ap.add_argument("-R", type=int, default=32)
    ap.add_argument("--flags", default="nt")
    ap.add_argument("--vflags", default=None)
    ap.add_argument("-G", type=int, default=0)
    ap.add_argument("--rot", type=int, default=0)
    ap.add_argument("--lds", type=int, default=0)
    ap.add_argument("--stamps", action="store_true")
    ap.add_argument("-o", default="/dev/stdout")
    a = ap.parse_args()
    open(a.o, "w").write(gen(a.W, a.R, a.flags, a.vflags, a.G, a.rot, a.lds, a.stamps))
```

```python
import sys, argparse, struct

NAME = "standalone__tree_speculative_verify_tree_attention_over_candidate_token_tree__sampling"
HEADER = open("cdna_kernels/%s.s.ref" % NAME).read().split("; Override launch")[0]
def f2u(x): return struct.unpack("<I", struct.pack("<f", x))[0]
DPPF = "row_mask:0xf bank_mask:0xf"

def gen(W=4, R=5, G=4, flags="nt", T=16, burst=99, slope=0, lds_min=90000, stamps=False, oflags="", R0=None, xtra=1):
    kname = NAME + "_kernel"
    C = 8 if R <= 7 else 16
    U = C
    NK = 2048 // W
    NL = NK // 4
    NIT = NL // U
    GPI = U // 4
    assert T % U == 0 and T >= U
    J0 = NL - T
    total = 2 * NL
    out = []
    e = out.append
    v_lane = 1; v_offK = 2; v_offV = 3; v_m0 = 4; v_m1 = 5
    v_max = 6; v_sum = 7; X = [8, 9, 10, 11]
    v_Q = 12; v_KT = 16; v_VT = 20; v_A = 24; v_acc = 28; v_D = 36
    v_sa = 52
    v_Sn = 54
    v_P = v_Sn + 4
    v_TP = v_P + 4
    v_tv = (v_TP + T // 4 + 1) // 2 * 2
    v_g = v_tv + 8
    v_ml = v_g + 2 - (v_g % 2)
    v_ring = (v_ml + 2 * (W + 1) + 3) // 4 * 4
    v_tail = v_ring + 4 * C
    nv = v_tail + 4 * T
    assert nv <= 256, nv
    s_w = 20; s_off = 21; s_c = 22; s_mask = 23
    s_M1 = 24; s_M2 = 26; s_M3 = 28; s_cnt = 30
    s_K = 32; s_V = 36; s_Q = 40; s_KT = 44; s_VT = 48; s_O = 52
    s_tmp = 57
    lds_S = 0
    S_it = 256 * GPI
    lds_ml = W * NIT * S_it
    lds_O = lds_ml + 256
    lds_size = max(lds_O + W * 2048, lds_min)

    def off(j):
        return (j // G) * (W * G * 1024) + (j % G) * 1024
    def slot_of(i):
        if i >= NL + J0: return v_tail + 4 * (i - NL - J0)
        return v_ring + 4 * (i % C)
    state = {"soff": None}
    def load(i, rel=False):
        isV = i >= NL
        j = i - NL if isV else i
        o = off(j); hi, lo = o & ~4095, o & 4095
        if j == 0:
            e(f"    s_mov_b32 s{s_off}, 0")
        else:
            ph = off(j - 1) & ~4095
            if hi != ph:
                e(f"    s_add_u32 s{s_off}, s{s_off}, 0x{hi - ph:x}")
        sl = slot_of(i); srd = s_V if isV else s_K; vo = v_offV if isV else v_offK
        e(f"    buffer_load_dwordx4 v[{sl}:{sl+3}], v{vo}, s[{srd}:{srd+3}], s{s_off} offen offset:{lo} {flags}")

    def stamp(k):
        if stamps: e(f"    s_memrealtime s[{60+2*k}:{61+2*k}]")

    e(HEADER.rstrip())
    e("; Override launch geometry by editing the next line (default: block=256,")
    e(f"; @launch grid=(256,1,1) block=({W*64},1,1) lds={lds_size}")
    e('.amdgcn_target "amdgcn-amd-amdhsa--gfx950"')
    e(".text")
    e(f".globl {kname}")
    e(".p2align 8")
    e(f".type {kname},@function")
    e(f"{kname}:")
    e("    s_load_dwordx16 s[4:19], s[0:1], 0")
    stamp(0)
    if stamps: e("    s_load_dwordx2 s[90:91], s[0:1], 64")
    e(f"    v_lshrrev_b32 v{X[0]}, 6, v0")
    e(f"    v_and_b32 v{v_lane}, 63, v0")
    e(f"    v_readfirstlane_b32 s{s_w}, v{X[0]}")
    e("    s_cmp_ge_u32 s2, 256")
    e("    s_cbranch_scc1 L_end")
    e(f"    v_lshlrev_b32 v{v_offV}, 4, v{v_lane}")
    e(f"    v_and_b32 v{X[0]}, 12, v{v_lane}")
    e(f"    v_lshlrev_b32 v{X[0]}, 6, v{X[0]}")
    e(f"    v_and_b32 v{X[1]}, 48, v{v_lane}")
    e(f"    v_lshlrev_b32 v{X[1]}, 2, v{X[1]}")
    e(f"    v_and_b32 v{X[2]}, 48, v{v_offV}")
    e(f"    v_or3_b32 v{v_offK}, v{X[0]}, v{X[1]}, v{X[2]}")
    e(f"    s_mul_i32 s{s_tmp}, s{s_w}, {G*1024}")
    e(f"    s_lshl_b32 s3, s2, 19")
    e(f"    s_add_u32 s3, s3, s{s_tmp}")
    e(f"    s_sub_u32 s{s_K+2}, 0x80000, s{s_tmp}")
    e(f"    s_mov_b32 s{s_K+3}, 0x20000")
    e(f"    s_mov_b32 s{s_V+2}, s{s_K+2}")
    e(f"    s_mov_b32 s{s_V+3}, 0x20000")
    e(f"    s_mov_b32 s{s_Q+2}, 1024")
    e(f"    s_mov_b32 s{s_Q+3}, 0x20000")
    e(f"    s_lshl_b32 s{s_tmp}, s2, 10")
    e("    s_waitcnt lgkmcnt(0)")
    stamp(1)
    e(f"    s_add_u32 s{s_K}, s6, s3")
    e(f"    s_addc_u32 s{s_K+1}, s7, 0")
    e(f"    s_add_u32 s{s_Q}, s4, s{s_tmp}")
    e(f"    s_addc_u32 s{s_Q+1}, s5, 0")
    e(f"    buffer_load_dwordx4 v[{v_Q}:{v_Q+3}], v{v_offK}, s[{s_Q}:{s_Q+3}], 0 offen")
    for i in range(R):
        load(i)
    e(f"    s_add_u32 s{s_V}, s8, s3")
    e(f"    s_addc_u32 s{s_V+1}, s9, 0")
    e(f"    s_add_u32 s{s_O}, s16, s{s_tmp}")
    e(f"    s_addc_u32 s{s_O+1}, s17, 0")
    e(f"    s_mov_b32 s{s_O+2}, 1024")
    e(f"    s_mov_b32 s{s_O+3}, 0x20000")
    e(f"    s_lshl_b32 s{s_tmp}, s2, 8")
    e(f"    s_add_u32 s{s_KT}, s10, s{s_tmp}")
    e(f"    s_addc_u32 s{s_KT+1}, s11, 0")
    e(f"    s_mov_b32 s{s_KT+2}, 256")
    e(f"    s_mov_b32 s{s_KT+3}, 0x20000")
    e(f"    s_add_u32 s{s_VT}, s12, s{s_tmp}")
    e(f"    s_addc_u32 s{s_VT+1}, s13, 0")
    e(f"    s_mov_b32 s{s_VT+2}, 256")
    e(f"    s_mov_b32 s{s_VT+3}, 0x20000")
    e(f"    s_lshr_b32 s{s_tmp}, s2, 4")
    e(f"    s_lshl_b32 s{s_tmp}, s{s_tmp}, 2")
    e(f"    s_load_dword s{s_mask}, s[14:15], s{s_tmp}")
    e(f"    s_mov_b32 s{s_c}, 0x{f2u(128**-0.5 * 1.4426950408889634):08x}")
    for sm, val in ((s_M1, 0x22222222), (s_M2, 0x44444444), (s_M3, 0x88888888)):
        e(f"    s_mov_b32 s{sm}, 0x{val:x}")
        e(f"    s_mov_b32 s{sm+1}, 0x{val:x}")
    e(f"    v_mov_b32 v{X[0]}, 0xffff")
    e(f"    v_mov_b32 v{X[1]}, 0xffff0000")
    e(f"    v_cndmask_b32 v{v_m0}, v{X[0]}, v{X[1]}, s[{s_M1}:{s_M1+1}]")
    e(f"    v_cndmask_b32 v{v_m0}, v{v_m0}, 0, s[{s_M2}:{s_M2+1}]")
    e(f"    v_cndmask_b32 v{v_m0}, v{v_m0}, 0, s[{s_M3}:{s_M3+1}]")
    e(f"    v_cndmask_b32 v{v_m1}, 0, v{X[0]}, s[{s_M2}:{s_M2+1}]")
    e(f"    v_cndmask_b32 v{v_m1}, v{v_m1}, v{X[1]}, s[{s_M3}:{s_M3+1}]")
    for k in range(8):
        e(f"    v_mov_b32 v{v_acc+k}, 0")
    e(f"    v_mov_b32 v{v_max}, 0xff7fffff")
    e(f"    v_mov_b32 v{v_sum}, 0")
    e(f"    s_mul_i32 s{s_tmp}, s{s_w}, {NIT*S_it}")
    e(f"    v_mul_u32_u24 v{v_sa}, {4*GPI}, v{v_lane}")
    e(f"    v_add_u32 v{v_sa}, s{s_tmp}, v{v_sa}")
    e(f"    s_mov_b32 s{s_cnt}, {NIT-1}")

    def D(m, r): return v_D + 4 * m + r
    def extract(dst):
        e("    s_nop 7")
        for s in range(4):
            e(f"    v_cndmask_b32 v{X[s]}, v{D(s,0)}, v{D((s+1)&3,1)}, s[{s_M1}:{s_M1+1}]")
        for s in range(4):
            e(f"    v_cndmask_b32 v{X[s]}, v{X[s]}, v{D((s+2)&3,2)}, s[{s_M2}:{s_M2+1}]")
        for s in (2, 3, 0, 1):
            e(f"    v_cndmask_b32 v{X[s]}, v{X[s]}, v{D((s+3)&3,3)}, s[{s_M3}:{s_M3+1}]")
        e(f"    v_add_f32_dpp v{X[2]}, v{X[3]}, v{X[2]} quad_perm:[3,0,1,2] {DPPF}")
        e(f"    s_nop 0")
        e(f"    v_add_f32_dpp v{X[0]}, v{X[1]}, v{X[0]} quad_perm:[3,0,1,2] {DPPF}")
        e(f"    s_nop 1")
        e(f"    v_add_f32_dpp v{dst}, v{X[2]}, v{X[0]} quad_perm:[2,3,0,1] {DPPF}")
        e(f"    v_max_f32 v{v_max}, v{v_max}, v{dst}")
    wr = {2: "ds_write_b64", 4: "ds_write_b128"}[GPI]
    rd = {2: "ds_read_b64", 4: "ds_read_b128"}[GPI]

    def k_iter(it, extra_out=0):
        for p in range(U):
            i = it * U + p
            e(f"    s_waitcnt vmcnt({R - 1})")
            if it == 0 and p == 0: pass
            load(i + R)
            sl = slot_of(i)
            e(f"    v_mfma_f32_16x16x32_bf16 v[{D(p%4,0)}:{D(p%4,3)}], v[{sl}:{sl+3}], v[{v_Q}:{v_Q+3}], 0")
            if p % 4 == 3:
                extract(v_Sn + p // 4)
        e(f"    {wr} v{v_sa}, v[{v_Sn}:{v_Sn+GPI-1}]")
        e(f"    v_add_u32 v{v_sa}, {S_it}, v{v_sa}")

    if stamps:
        e(f"    s_waitcnt vmcnt({R - 1})")
        stamp(2)
    for j in range(1, NL - U):
        assert (off(j + U) & ~4095) - (off(j + U - 1) & ~4095) == (off(j) & ~4095) - (off(j - 1) & ~4095)
    e("    .p2align 6") if False else None
    e("L_k:")
    k_iter(1)
    e(f"    s_sub_u32 s{s_cnt}, s{s_cnt}, 1")
    if stamps:
        e(f"    s_cmp_eq_u32 s{s_cnt}, {NIT//2 - 1}")
        e(f"    s_cbranch_scc0 L_ns1")
        stamp(4)
        e("L_ns1:")
    e(f"    s_cmp_lg_u32 s{s_cnt}, 0")
    e("    s_cbranch_scc1 L_k")
    k_iter(NIT - 1)
    stamp(6)
    nxt = NL + R
    e(f"    buffer_load_dwordx4 v[{v_KT}:{v_KT+3}], v{v_offK}, s[{s_KT}:{s_KT+3}], 0 offen")
    e(f"    v_and_b32 v{X[0]}, 0xf0, v{v_offV}")
    e(f"    buffer_load_dwordx4 v[{v_VT}:{v_VT+3}], v{X[0]}, s[{s_VT}:{s_VT+3}], 0 offen")
    e(f"    v_subrev_u32 v{v_sa}, {NIT*S_it}, v{v_sa}")
    e(f"    {rd} v[{v_Sn}:{v_Sn+GPI-1}], v{v_sa}")
    def allreduce(reg, op):
        e(f"    {op}_dpp v{reg}, v{reg}, v{reg} quad_perm:[1,0,3,2] {DPPF}")
        e("    s_nop 1")
        e(f"    {op}_dpp v{reg}, v{reg}, v{reg} quad_perm:[2,3,0,1] {DPPF}")
        e("    s_nop 0")
        e(f"    v_mov_b32 v{X[0]}, v{reg}")
        e("    s_nop 1")
        e(f"    v_permlane16_swap_b32 v{X[0]}, v{reg}")
        e("    s_nop 1")
        e(f"    {op} v{reg}, v{reg}, v{X[0]}")
        e("    s_nop 0")
        e(f"    v_mov_b32 v{X[0]}, v{reg}")
        e("    s_nop 1")
        e(f"    v_permlane32_swap_b32 v{X[0]}, v{reg}")
        e("    s_nop 1")
        e(f"    {op} v{reg}, v{reg}, v{X[0]}")
    allreduce(v_max, "v_max_f32")
    e(f"    v_mul_f32 v{v_max}, s{s_c}, v{v_max}")
    def mkP(regs, dsts):
        for r in regs: e(f"    v_fma_f32 v{r}, v{r}, s{s_c}, -v{v_max}")
        for r in regs: e(f"    v_exp_f32 v{r}, v{r}")
        e("    s_nop 0")
        for r in regs: e(f"    v_add_f32 v{v_sum}, v{v_sum}, v{r}")
        for r, d in zip(regs, dsts):
            if d is not None: e(f"    v_cvt_pk_bf16_f32 v{d}, v{r}, v{r}")
    e("    s_waitcnt lgkmcnt(0)")
    mkP([v_Sn + k for k in range(GPI)], [v_P + k for k in range(GPI)])
    NVIT = J0 // U
    def pv(i, P, qq, j):
        A = v_A + 2 * (j & 1)
        sl = slot_of(i)
        return A, sl
    def andP(A, P, qq):
        e(f"    v_and_b32_dpp v{A}, v{P}, v{v_m0} quad_perm:[{qq},{qq},{qq},{qq}] {DPPF}")
        e(f"    v_and_b32_dpp v{A+1}, v{P}, v{v_m1} quad_perm:[{qq},{qq},{qq},{qq}] {DPPF}")
    def mf(A, sl):
        e(f"    v_mfma_f32_16x16x16_bf16 v[{v_acc}:{v_acc+3}], v[{A}:{A+1}], v[{sl}:{sl+1}], v[{v_acc}:{v_acc+3}]")
        e(f"    v_mfma_f32_16x16x16_bf16 v[{v_acc+4}:{v_acc+7}], v[{A}:{A+1}], v[{sl+2}:{sl+3}], v[{v_acc+4}:{v_acc+7}]")
    def v_iter(it, first=False):
        e(f"    v_add_u32 v{v_sa}, {S_it}, v{v_sa}")
        e(f"    {rd} v[{v_Sn}:{v_Sn+GPI-1}], v{v_sa}")
        for p in range(U):
            j = it * U + p; i = NL + j
            A = v_A + 2 * (p & 1)
            andP(A, v_P + p // 4, p % 4)
            n = R - 1 + (2 if (first and p < R) else 0)
            e(f"    s_waitcnt vmcnt({n})")
            load(i + R)
            mf(A, slot_of(i))
            if p == 1:
                e("    s_waitcnt lgkmcnt(0)")
                mkP([v_Sn + k for k in range(GPI)], [None] * GPI)
            if p % 4 == 3:
                g = p // 4
                e(f"    v_cvt_pk_bf16_f32 v{v_P+g}, v{v_Sn+g}, v{v_Sn+g}")
                if p == U - 1: e("    s_nop 0")
    assert NVIT >= 3
    v_iter(0, first=True)
    e(f"    v_mfma_f32_16x16x32_bf16 v[{D(0,0)}:{D(0,3)}], v[{v_KT}:{v_KT+3}], v[{v_Q}:{v_Q+3}], 0")
    e(f"    s_bitcmp1_b32 s2, 3")
    e(f"    s_cselect_b32 s{s_tmp}, 0, 16")
    e(f"    s_lshl_b32 s{s_mask}, s{s_mask}, s{s_tmp}")
    e(f"    s_and_b32 s{s_mask}, s{s_mask}, 0xffff0000")
    e(f"    s_mov_b32 s{s_cnt}, {NVIT-2}")
    e("    s_nop 4")
    e(f"    v_cndmask_b32 v{X[0]}, v{D(0,0)}, v{D(0,1)}, s[{s_M1}:{s_M1+1}]")
    e(f"    v_cndmask_b32 v{X[0]}, v{X[0]}, v{D(0,2)}, s[{s_M2}:{s_M2+1}]")
    e(f"    v_cndmask_b32 v{X[0]}, v{X[0]}, v{D(0,3)}, s[{s_M3}:{s_M3+1}]")
    e(f"    v_mov_b32 v{X[1]}, s{s_mask}")
    e(f"    v_sub_f32 v{X[1]}, 1.0, v{X[1]}")
    e(f"    v_add_f32_dpp v{X[0]}, v{X[0]}, v{X[0]} quad_perm:[1,0,3,2] {DPPF}")
    e(f"    v_mul_f32 v{X[1]}, 0x{f2u(-1e9*1.4426950408889634):08x}, v{X[1]}")
    e(f"    s_nop 0")
    e(f"    v_add_f32_dpp v{X[0]}, v{X[0]}, v{X[0]} quad_perm:[2,3,0,1] {DPPF}")
    e(f"    s_nop 0")
    e(f"    v_fma_f32 v{v_KT}, v{X[0]}, s{s_c}, v{X[1]}")
    e(f"    v_mov_b32 v{v_KT+1}, 1.0")
    e("L_v:")
    v_iter(1)
    e(f"    s_sub_u32 s{s_cnt}, s{s_cnt}, 1")
    if stamps:
        e(f"    s_cmp_eq_u32 s{s_cnt}, {NVIT - 2 - (NIT//2 - 1)}")
        e(f"    s_cbranch_scc0 L_ns2")
        stamp(8)
        e("    s_waitcnt lgkmcnt(0)")
        e("L_ns2:")
    e(f"    s_cmp_lg_u32 s{s_cnt}, 0")
    e("    s_cbranch_scc1 L_v")
    v_iter(NVIT - 1)
    stamp(9)
    q = [NL + J0 + k for k in range(R)]
    nxt = NL + J0 + R
    def issue_upto(lim):
        nonlocal nxt
        while nxt < min(total, lim):
            load(nxt); q.append(nxt); nxt += 1
    issue_upto(NL + J0 + R + burst)
    nrest = T // 4 - GPI
    for k in range(nrest // GPI):
        e(f"    {rd} v[{v_TP+k*GPI}:{v_TP+k*GPI+GPI-1}], v{v_sa} offset:{(k+1)*S_it}")
    if nrest:
        e("    s_waitcnt lgkmcnt(0)")
        mkP([v_TP + k for k in range(nrest)], [v_TP + k for k in range(nrest)])
    e("    s_nop 1")
    allreduce(v_sum, "v_add_f32")
    assert v_sum == v_max + 1 and v_max % 2 == 0
    e(f"    v_and_b32 v{X[0]}, 12, v{v_lane}")
    e(f"    v_lshlrev_b32 v{X[0]}, 1, v{X[0]}")
    e(f"    s_lshl_b32 s{s_tmp}, s{s_w}, 5")
    e(f"    v_add_u32 v{X[1]}, s{s_tmp}, v{X[0]}")
    e(f"    s_mov_b64 exec, 0x1111")
    e(f"    ds_write_b64 v{X[1]}, v[{v_max}:{v_max+1}] offset:{lds_ml}")
    e(f"    s_cmp_lg_u32 s{s_w}, 0")
    e(f"    s_cbranch_scc1 L_notree")
    e(f"    ds_write_b64 v{X[0]}, v[{v_KT}:{v_KT+1}] offset:{lds_ml + W*32}")
    e("L_notree:")
    e(f"    s_mov_b64 exec, -1")
    e(f"    v_lshrrev_b32 v{X[0]}, 4, v{v_lane}")
    e(f"    v_lshlrev_b32 v{X[0]}, 3, v{X[0]}")
    e(f"    v_add_u32 v{X[1]}, s{s_tmp}, v{X[0]}")
    e("    s_waitcnt lgkmcnt(0)")
    e("    s_barrier")
    for w in range(W + 1):
        e(f"    ds_read_b64 v[{v_ml+2*w}:{v_ml+2*w+1}], v{X[0]} offset:{lds_ml + w*32}")
    e(f"    ds_read_b32 v{v_g}, v{X[1]} offset:{lds_ml}")
    for k in range(4):
        e(f"    v_lshlrev_b32 v{v_tv+2*k}, 16, v{v_VT+k}")
        e(f"    v_and_b32 v{v_tv+2*k+1}, 0xffff0000, v{v_VT+k}")
    e("    s_waitcnt lgkmcnt(0)")
    e(f"    v_max_f32 v{X[2]}, v{v_ml}, v{v_ml+2}")
    for w in range(2, W + 1):
        e(f"    v_max_f32 v{X[2]}, v{X[2]}, v{v_ml+2*w}")
    for w in range(W + 1):
        e(f"    v_sub_f32 v{v_ml+2*w}, v{v_ml+2*w}, v{X[2]}")
    e(f"    v_sub_f32 v{v_g}, v{v_g}, v{X[2]}")
    for w in range(W + 1):
        e(f"    v_exp_f32 v{v_ml+2*w}, v{v_ml+2*w}")
    e(f"    v_exp_f32 v{v_g}, v{v_g}")
    e(f"    v_mul_f32 v{X[3]}, v{v_ml}, v{v_ml+1}")
    for w in range(1, W + 1):
        e(f"    v_fmac_f32 v{X[3]}, v{v_ml+2*w}, v{v_ml+2*w+1}")
    e(f"    v_rcp_f32 v{X[3]}, v{X[3]}")
    e(f"    s_cmp_eq_u32 s{s_w}, 0")
    e(f"    s_cselect_b32 s{s_tmp}, 1.0, 0")
    e(f"    v_mul_f32 v{v_g}, v{v_g}, v{X[3]}")
    e(f"    v_mul_f32 v{X[3]}, v{v_ml+2*W}, v{X[3]}")
    e(f"    v_mul_f32 v{X[3]}, s{s_tmp}, v{X[3]}")
    for k in range(8):
        e(f"    v_mul_f32 v{v_tv+k}, v{X[3]}, v{v_tv+k}")
    e(f"    s_lshl_b32 s{s_tmp}, s{s_w}, 11")
    e(f"    v_lshlrev_b32 v{X[2]}, 5, v{v_lane}")
    e(f"    v_add_u32 v{X[2]}, s{s_tmp}, v{X[2]}")
    OPW = 512 // W
    assert OPW == 128
    e(f"    s_lshl_b32 s{s_tmp}, s{s_w}, 9")
    e(f"    v_lshlrev_b32 v{X[3]}, 3, v{v_lane}")
    e(f"    v_add_u32 v{X[3]}, s{s_tmp}, v{X[3]}")
    e(f"    v_lshrrev_b32 v{v_sa}, 1, v{X[3]}")
    for j in range(J0, NL):
        i = NL + j
        g = (j - J0) // 4
        P = v_P + g if g < GPI else v_TP + g - GPI
        A = v_A + 2 * (j & 1)
        andP(A, P, j % 4)
        idx = q.index(i); n = len(q) - 1 - idx
        e(f"    s_waitcnt vmcnt({n})")
        del q[:idx + 1]
        before = nxt
        issue_upto(i + 1 + R + burst + slope * (j - J0 + 1))
        if nxt == before: e("    s_nop 0")
        mf(A, slot_of(i))
    stamp(10)
    e("    s_nop 6")
    for k in range(8):
        e(f"    v_fma_f32 v{v_acc+k}, v{v_acc+k}, v{v_g}, v{v_tv+k}")
        if k == 3: e(f"    ds_write_b128 v{X[2]}, v[{v_acc}:{v_acc+3}] offset:{lds_O}")
    e(f"    ds_write_b128 v{X[2]}, v[{v_acc+4}:{v_acc+7}] offset:{lds_O+16}")
    e("    s_waitcnt lgkmcnt(0)")
    e("    s_barrier")
    for w in range(W):
        e(f"    ds_read_b64 v[{v_D+2*w}:{v_D+2*w+1}], v{X[3]} offset:{lds_O + w*2048}")
    e("    s_waitcnt lgkmcnt(2)")
    e(f"    v_add_f32 v{v_D}, v{v_D}, v{v_D+2}")
    e(f"    v_add_f32 v{v_D+1}, v{v_D+1}, v{v_D+3}")
    e("    s_waitcnt lgkmcnt(0)")
    e(f"    v_add_f32 v{v_D+4}, v{v_D+4}, v{v_D+6}")
    e(f"    v_add_f32 v{v_D+5}, v{v_D+5}, v{v_D+7}")
    e(f"    v_add_f32 v{v_D}, v{v_D}, v{v_D+4}")
    e(f"    v_add_f32 v{v_D+1}, v{v_D+1}, v{v_D+5}")
    e(f"    v_cvt_pk_bf16_f32 v{v_D}, v{v_D}, v{v_D+1}")
    e(f"    buffer_store_dword v{v_D}, v{v_sa}, s[{s_O}:{s_O+3}], 0 offen {oflags}")
    e("L_fin:")
    if stamps:
        e("    s_memrealtime s[82:83]")
        e("    s_waitcnt lgkmcnt(0)")
        for k in (3, 5, 7):
            e(f"    s_mov_b32 s{60+2*k}, 0")
            e(f"    s_mov_b32 s{61+2*k}, 0")
        e(f"    s_mul_i32 s{s_tmp}, s2, {W}")
        e(f"    s_add_u32 s{s_tmp}, s{s_tmp}, s{s_w}")
        e(f"    s_lshl_b32 s{s_tmp}, s{s_tmp}, 7")
        e(f"    s_add_u32 s92, s90, s{s_tmp}")
        e(f"    s_addc_u32 s93, s91, 0")
        e(f"    s_mov_b32 s94, 128")
        e(f"    s_mov_b32 s95, 0x20000")
        e(f"    s_getreg_b32 s84, hwreg(HW_REG_XCC_ID)")
        e(f"    s_getreg_b32 s85, hwreg(HW_REG_HW_ID)")
        for k in range(28):
            e(f"    v_mov_b32 v{v_ring+k}, s{60+k}")
        e(f"    v_mov_b32 v{v_lane}, 0")
        e(f"    s_mov_b64 exec, 1")
        for k in range(7):
            e(f"    buffer_store_dwordx4 v[{v_ring+4*k}:{v_ring+4*k+3}], v{v_lane}, s[92:95], 0 offen offset:{16*k}")
    e("L_end:")
    e("    s_endpgm")
    e('.section .rodata,"a"')
    e(".p2align 6")
    e(f".amdhsa_kernel {kname}")
    e(f"  .amdhsa_next_free_vgpr {nv}")
    e("  .amdhsa_next_free_sgpr 96")
    e(f"  .amdhsa_accum_offset {(nv+3)//4*4}")
    e("  .amdhsa_group_segment_fixed_size 0")
    e("  .amdhsa_kernarg_size 72")
    e("  .amdhsa_user_sgpr_count 2")
    e("  .amdhsa_user_sgpr_kernarg_segment_ptr 1")
    e("  .amdhsa_system_sgpr_workgroup_id_x 1")
    e(".end_amdhsa_kernel")
    return "\n".join(x for x in out if x is not None) + "\n"

if __name__ == "__main__":
    ap = argparse.ArgumentParser()
    ap.add_argument("-W", type=int, default=4)
    ap.add_argument("-R", type=int, default=5)
    ap.add_argument("-G", type=int, default=4)
    ap.add_argument("-T", type=int, default=16)
    ap.add_argument("--burst", type=int, default=99)
    ap.add_argument("--slope", type=int, default=0)
    ap.add_argument("--flags", default="nt")
    ap.add_argument("--oflags", default="")
    ap.add_argument("--lds", type=int, default=90000)
    ap.add_argument("--stamps", action="store_true")
    ap.add_argument("-o", default="/dev/stdout")
    a = ap.parse_args()
    open(a.o, "w").write(gen(a.W, a.R, a.G, a.flags, a.T, a.burst, a.slope, a.lds, a.stamps, a.oflags))
```

```python
import sys, argparse, struct

NAME = "standalone__tree_speculative_verify_tree_attention_over_candidate_token_tree__sampling"
HEADER = open("cdna_kernels/%s.s.ref" % NAME).read().split("; Override launch")[0]
def f2u(x): return struct.unpack("<I", struct.pack("<f", x))[0]
DPPF = "row_mask:0xf bank_mask:0xf"

DOC = """\
; ---------------------------------------------------------------------------------------------
; The kernel is HBM bound (256 MiB of K/V read once), so everything is built around the stream.
;
;          the matching-quarter entries are picked and summed across the quad with DPP, giving
;     DRAM pages busy; workgroups with equal id%8 own whole 2 MiB runs.
;     is behind the common pace keeps 6-7 loads in flight for an iteration, one that is far ahead 4.
;     This only changes s_waitcnt depths, never the arithmetic; entries of d_ws that were not
;     written by this launch are recognised by their time and ignored; every helper loop is bounded.
; ---------------------------------------------------------------------------------------------"""

def gen(stamps=False, Rn=5, R0=6, cp=2, slp=8, giveup=2, kappa=8, gp=6, gfill=35, gg=4, dz=(30, 5), omax=960, omin=320,
        ml=(("44444444", -40, -28), ("55555555", 0, 0), ("66666666", 10, 19), ("77777777", 40, 32)), endn=2, endx=20,
        perm="j2,j1,w0,w1,j3,j4,j0,j5,j6", xm=((0, 14), (1, 15)), lds_min=90000):
    kname = NAME + "_kernel"
    W = 4; C = 8; U = 8; PD = 7
    NL = 128; NIT = 16
    total = 2 * NL
    NPASS = (NIT - 1) + (NIT - 2)
    out = []; e = out.append
    c = lambda t: e("    ; " + t)
    v_z = 0; v_lane = 1; v_offK = 2; v_offV = 3; v_m0 = 4; v_m1 = 5
    v_max = 6; v_sum = 7; X = [8, 9, 10, 11]
    v_Q = 12; v_KT = 16; v_VT = 20; v_A = 24; v_acc = 28; v_D = 36
    v_sa = 52; v_hist = 53; v_Sn = 54; v_P = 56; v_mb = 58
    v_tv = 60; v_g = 68; v_ml = 70; v_ring = 80
    nv = v_ring + 4 * C
    s_B = 18; s_itc = 19; s_w = 20; s_off = 21; s_c = 22; s_mask = 23
    s_M1 = 24; s_M2 = 26; s_M3 = 28; s_cnt = 30; s_pw = 31
    s_K = 32; s_V = 36; s_Q = 40; s_KT = 44; s_VT = 48; s_O = 52
    s_X = 56; s_tmp = 57; s_t2 = 58; s_t3 = 59
    if stamps: s_now = 96; s_A = 98; s_base = 99; s_cA = 100; ns = 102
    else: s_now = 60; s_A = 62; s_base = 63; s_cA = 64; ns = 66
    S_it = 512
    lds_ml = W * NIT * S_it
    lds_O = lds_ml + 256
    lds_T = lds_O + W * 2048
    lds_R = lds_T + 256
    lds_size = max(lds_R + 64, lds_min)
    lastc = NPASS - 2 - giveup
    lastc -= lastc % cp

    pm = perm.split(",")
    def off(j): return sum(((j >> int(src[1])) & 1) << (10 + k) for k, src in enumerate(pm) if src[0] == "j")
    wbits = [10 + pm.index("w0"), 10 + pm.index("w1")]
    lom = 4095 & ~sum(1 << db for db in set(db for _, db in xm))
    def slot_of(i): return v_ring + 4 * (i % C)
    cur = {"hi": None}
    def load(i):
        isV = i >= NL
        j = i - NL if isV else i
        if j == 0:
            e(f"    s_mov_b32 s{s_itc}, 0")
            e(f"    s_mov_b32 s{s_B}, s{s_X}")
            cur["hi"] = None
        elif j % 8 == 0:
            e(f"    s_add_u32 s{s_itc}, s{s_itc}, 1")
            runs = []
            for b_ in range(4):
                ab = 10 + pm.index(f"j{b_+3}")
                if runs and runs[-1][1] + runs[-1][2] == ab: runs[-1][2] += 1
                else: runs.append([b_, ab, 1])
            first = True
            for b_, ab, n in runs:
                dst = s_B if first else s_off
                e(f"    s_bfe_u32 s{dst}, s{s_itc}, 0x{(n << 16) | b_:x}")
                e(f"    s_lshl_b32 s{dst}, s{dst}, {ab}")
                if not first: e(f"    s_or_b32 s{s_B}, s{s_B}, s{s_off}")
                first = False
            e(f"    s_xor_b32 s{s_B}, s{s_B}, s{s_X}")
            cur["hi"] = None
        o = off(j % 8); hi, lo = o & ~lom, o & lom
        so = s_B
        if hi:
            if cur["hi"] != hi: e(f"    s_xor_b32 s{s_off}, s{s_B}, 0x{hi:x}")
            cur["hi"] = hi
            so = s_off
        sl = slot_of(i); srd = s_V if isV else s_K; vo = v_offV if isV else v_offK
        e(f"    buffer_load_dwordx4 v[{sl}:{sl+3}], v{vo}, s[{srd}:{srd+3}], s{so} offen offset:{lo} nt")
    def stamp(k):
        if stamps: e(f"    s_memrealtime s[{60+2*k}:{61+2*k}]")

    e(HEADER.rstrip())
    e("; Override launch geometry by editing the next line (default: block=256,")
    e(f"; @launch grid=(256,1,1) block=({W*64+64},1,1) lds={lds_size}")
    e(DOC)
    e('.amdgcn_target "amdgcn-amd-amdhsa--gfx950"')
    e(".text")
    e(f".globl {kname}")
    e(".p2align 8")
    e(f".type {kname},@function")
    e(f"{kname}:")
    e("    s_load_dwordx16 s[4:19], s[0:1], 0")
    e(f"    s_memrealtime s[{s_now}:{s_now+1}]                  ; checkpoint 0")
    stamp(0)
    if stamps: e("    s_load_dwordx2 s[90:91], s[0:1], 64")
    e(f"    v_lshrrev_b32 v{X[0]}, 6, v0")
    e(f"    v_and_b32 v{v_lane}, 63, v0")
    e(f"    v_readfirstlane_b32 s{s_w}, v{X[0]}")
    e("    s_cmp_ge_u32 s2, 256")
    e("    s_cbranch_scc1 L_end")
    e(f"    v_lshlrev_b32 v{v_offV}, 4, v{v_lane}")
    e(f"    v_and_b32 v{X[0]}, 12, v{v_lane}")
    e(f"    v_lshlrev_b32 v{X[0]}, 6, v{X[0]}")
    e(f"    s_cmp_eq_u32 s{s_w}, {W}")
    e("    s_cbranch_scc1 L_helper")
    e(f"    s_mov_b32 s{s_pw}, s2")
    c("pair index: id bits [7:5][2:0][4:3]")
    e("    s_and_b32 s3, s2, 7")
    e("    s_lshl_b32 s3, s3, 2")
    e("    s_bfe_u32 s21, s2, 0x20003")
    e("    s_or_b32 s3, s3, s21")
    e("    s_and_b32 s2, s2, 0xe0")
    e("    s_or_b32 s2, s2, s3")
    if stamps: e(f"    s_mov_b32 s88, s{s_pw}")
    c("K / Q lane offset: key*256 + (lane>>4)*64 + (lane&3)*16, key = (lane>>2)&3")
    e(f"    v_and_b32 v{X[1]}, 48, v{v_lane}")
    e(f"    v_lshlrev_b32 v{X[1]}, 2, v{X[1]}")
    e(f"    v_and_b32 v{X[2]}, 48, v{v_offV}")
    e(f"    v_or3_b32 v{v_offK}, v{X[0]}, v{X[1]}, v{X[2]}")
    assert wbits[1] == wbits[0] + 1
    e(f"    s_lshl_b32 s{s_tmp}, s{s_w}, {wbits[0]}")
    assert [sb for sb, _ in xm] == [0, 1] and xm[1][1] == xm[0][1] + 1
    e(f"    s_and_b32 s{s_X}, s2, 3")
    e(f"    s_lshl_b32 s{s_X}, s{s_X}, {xm[0][1]}")
    e(f"    s_lshl_b32 s3, s2, 19")
    e(f"    s_add_u32 s3, s3, s{s_tmp}")
    e(f"    s_sub_u32 s{s_K+2}, 0x80000, s{s_tmp}")
    e(f"    s_mov_b32 s{s_K+3}, 0x20000")
    e(f"    s_mov_b32 s{s_V+2}, s{s_K+2}")
    e(f"    s_mov_b32 s{s_V+3}, 0x20000")
    e(f"    s_mov_b32 s{s_Q+2}, 1024")
    e(f"    s_mov_b32 s{s_Q+3}, 0x20000")
    e(f"    s_lshl_b32 s{s_tmp}, s2, 10")
    e("    s_waitcnt lgkmcnt(0)")
    stamp(1)
    e(f"    s_add_u32 s{s_K}, s6, s3")
    e(f"    s_addc_u32 s{s_K+1}, s7, 0")
    e(f"    s_add_u32 s{s_Q}, s4, s{s_tmp}")
    e(f"    s_addc_u32 s{s_Q+1}, s5, 0")
    e(f"    buffer_load_dwordx4 v[{v_Q}:{v_Q+3}], v{v_offK}, s[{s_Q}:{s_Q+3}], 0 offen")
    for i in range(R0): load(i)
    c("the rest of the set-up runs under the first loads")
    e(f"    s_add_u32 s{s_V}, s8, s3")
    e(f"    s_addc_u32 s{s_V+1}, s9, 0")
    e(f"    s_add_u32 s{s_O}, s16, s{s_tmp}")
    e(f"    s_addc_u32 s{s_O+1}, s17, 0")
    e(f"    s_mov_b32 s{s_O+2}, 1024")
    e(f"    s_mov_b32 s{s_O+3}, 0x20000")
    e(f"    s_lshl_b32 s{s_tmp}, s2, 8")
    e(f"    s_add_u32 s{s_KT}, s10, s{s_tmp}")
    e(f"    s_addc_u32 s{s_KT+1}, s11, 0")
    e(f"    s_mov_b32 s{s_KT+2}, 256")
    e(f"    s_mov_b32 s{s_KT+3}, 0x20000")
    e(f"    s_add_u32 s{s_VT}, s12, s{s_tmp}")
    e(f"    s_addc_u32 s{s_VT+1}, s13, 0")
    e(f"    s_mov_b32 s{s_VT+2}, 256")
    e(f"    s_mov_b32 s{s_VT+3}, 0x20000")
    e(f"    s_lshr_b32 s{s_tmp}, s2, 4")
    e(f"    s_lshl_b32 s{s_tmp}, s{s_tmp}, 2")
    e(f"    s_load_dword s{s_mask}, s[14:15], s{s_tmp}")
    e(f"    s_mov_b32 s{s_c}, 0x{f2u(128**-0.5 * 1.4426950408889634):08x}                   ; D^-0.5 * log2(e)")
    for sm, val in ((s_M1, 0x22222222), (s_M2, 0x44444444), (s_M3, 0x88888888)):
        e(f"    s_mov_b32 s{sm}, 0x{val:x}")
        e(f"    s_mov_b32 s{sm+1}, 0x{val:x}")
    c("v4/v5: bf16 slot masks of the diagonal P operand (slot = lane&3)")
    e(f"    v_mov_b32 v{X[0]}, 0xffff")
    e(f"    v_mov_b32 v{X[1]}, 0xffff0000")
    e(f"    v_cndmask_b32 v{v_m0}, v{X[0]}, v{X[1]}, s[{s_M1}:{s_M1+1}]")
    e(f"    v_cndmask_b32 v{v_m0}, v{v_m0}, 0, s[{s_M2}:{s_M2+1}]")
    e(f"    v_cndmask_b32 v{v_m0}, v{v_m0}, 0, s[{s_M3}:{s_M3+1}]")
    e(f"    v_cndmask_b32 v{v_m1}, 0, v{X[0]}, s[{s_M2}:{s_M2+1}]")
    e(f"    v_cndmask_b32 v{v_m1}, v{v_m1}, v{X[1]}, s[{s_M3}:{s_M3+1}]")
    for k in range(8): e(f"    v_mov_b32 v{v_acc+k}, 0")
    e(f"    v_mov_b32 v{v_max}, 0xff7fffff")
    e(f"    v_mov_b32 v{v_sum}, 0")
    e(f"    s_mul_i32 s{s_tmp}, s{s_w}, {NIT*S_it}")
    e(f"    v_lshlrev_b32 v{v_sa}, 3, v{v_lane}")
    e(f"    v_add_u32 v{v_sa}, s{s_tmp}, v{v_sa}                    ; LDS address of this wave's scores")
    e(f"    v_mov_b32 v{v_z}, 0")
    e(f"    v_mov_b32 v{v_hist}, 0")
    e(f"    v_mov_b32 v{v_mb}, -1")
    e(f"    s_mov_b32 s{s_A}, 0")
    e(f"    s_mov_b32 s{s_cA}, 0")
    e(f"    s_mov_b32 s{s_base}, 0")
    e(f"    s_mov_b32 m0, 0")
    e(f"    s_bfe_u32 s{s_pw}, s{s_pw}, 0x10003")
    e(f"    s_add_u32 s{s_pw}, s{s_pw}, 1")
    e("    s_barrier")
    for i in range(R0, PD):
        e(f"    s_waitcnt vmcnt({R0-1})")
        load(i)

    def D(m, r): return v_D + 4 * m + r
    def extract(dst):
        e("    s_nop 7")
        for s in range(4):
            e(f"    v_cndmask_b32 v{X[s]}, v{D(s,0)}, v{D((s+1)&3,1)}, s[{s_M1}:{s_M1+1}]")
        for s in range(4):
            e(f"    v_cndmask_b32 v{X[s]}, v{X[s]}, v{D((s+2)&3,2)}, s[{s_M2}:{s_M2+1}]")
        for s in (2, 3, 0, 1):
            e(f"    v_cndmask_b32 v{X[s]}, v{X[s]}, v{D((s+3)&3,3)}, s[{s_M3}:{s_M3+1}]")
        e(f"    v_add_f32_dpp v{X[2]}, v{X[3]}, v{X[2]} quad_perm:[3,0,1,2] {DPPF}")
        e(f"    s_nop 0")
        e(f"    v_add_f32_dpp v{X[0]}, v{X[1]}, v{X[0]} quad_perm:[3,0,1,2] {DPPF}")
        e(f"    s_nop 1")
        e(f"    v_add_f32_dpp v{dst}, v{X[2]}, v{X[0]} quad_perm:[2,3,0,1] {DPPF}")
        e(f"    v_max_f32 v{v_max}, v{v_max}, v{dst}")

    def k_iter(it, R):
        cur["hi"] = None
        for p in range(U):
            i = it * U + p
            e(f"    s_waitcnt vmcnt({R[p] - 1})")
            load(i + PD)
            sl = slot_of(i)
            e(f"    v_mfma_f32_16x16x32_bf16 v[{D(p%4,0)}:{D(p%4,3)}], v[{sl}:{sl+3}], v[{v_Q}:{v_Q+3}], 0")
            if p % 4 == 3: extract(v_Sn + p // 4)
        e(f"    ds_write_b64 v{v_sa}, v[{v_Sn}:{v_Sn+1}]")
        e(f"    v_add_u32 v{v_sa}, {S_it}, v{v_sa}")

    def dispatcher(tag, exit_label):
        e(f"L_{tag}_disp:")
        e(f"    s_sub_u32 s{s_cnt}, s{s_cnt}, 1")
        e(f"    s_cbranch_scc1 {exit_label}")
        c("own time at checkpoint m0 (sampled one pass ago) -> history; mailbox as read one pass ago")
        e(f"    s_waitcnt lgkmcnt(0)")
        e(f"    v_readfirstlane_b32 s{s_t2}, v{v_mb}")
        e(f"    v_readfirstlane_b32 s{s_t3}, v{v_mb+1}")
        e(f"    s_add_u32 s{s_tmp}, s{s_now}, s{s_cA}")
        e(f"    v_writelane_b32 v{v_hist}, s{s_tmp}, m0")
        e(f"    s_cmp_lg_u32 s{s_w}, s{s_pw}")
        e(f"    s_cbranch_scc1 L_{tag}_nopub")
        e(f"    s_or_b32 s{s_tmp}, s{s_now}, 1")
        e(f"    v_mov_b32 v{X[0]}, s{s_tmp}")
        e(f"    s_lshl_b32 s{s_tmp}, m0, 2")
        e(f"    v_mov_b32 v{X[1]}, s{s_tmp}")
        e(f"    ds_write_b32 v{X[1]}, v{X[0]} offset:{lds_T}")
        e(f"L_{tag}_nopub:")
        e(f"    ds_read_b64 v[{v_mb}:{v_mb+1}], v{v_z} offset:{lds_R}")
        e(f"    s_memrealtime s[{s_now}:{s_now+1}]")
        e(f"    s_mov_b32 s{s_cA}, s{s_A}")
        e(f"    s_add_u32 m0, m0, 1")
        e(f"    s_cmp_lt_i32 s{s_t2}, 0")
        e(f"    s_cbranch_scc1 L_{tag}_pick")
        e(f"    v_readlane_b32 s{s_tmp}, v{v_hist}, s{s_t2}")
        e(f"    s_nop 0")
        e(f"    s_sub_i32 s{s_base}, s{s_tmp}, s{s_t3}")
        e(f"L_{tag}_pick:")
        c("lag behind the reference, less what deeper iterations since then should have gained")
        e(f"    s_sub_i32 s{s_tmp}, s{s_base}, s{s_A}")
        if tag == "v" and endn:
            e(f"    s_cmp_lt_u32 s{s_cnt}, {endn}")
            e(f"    s_cselect_b32 s{s_t2}, {endx}, 0")
            e(f"    s_add_i32 s{s_tmp}, s{s_tmp}, s{s_t2}")
        for m in range(len(ml) - 1, 1, -1):
            e(f"    s_cmp_gt_i32 s{s_tmp}, {ml[m][1]}")
            e(f"    s_cbranch_scc1 L_{tag}_m{m}")
        e(f"    s_cmp_lt_i32 s{s_tmp}, {ml[0][1]}")
        e(f"    s_cbranch_scc1 L_{tag}_m0")
    def bodies(tag, body):
        for m in [1, 0] + list(range(2, len(ml))):
            e(f"L_{tag}_m{m}:                                     ; {ml[m][0][0]} loads in flight")
            if ml[m][2]: e(f"    s_add_i32 s{s_A}, s{s_A}, {ml[m][2]}")
            if stamps: e(f"    s_add_u32 s86, s86, {1 << (8*m)}")
            body([int(ch) for ch in ml[m][0]], m)
            e(f"    s_branch L_{tag}_disp")

    if stamps:
        e(f"    s_mov_b32 s86, 0")
        e(f"    s_waitcnt vmcnt({PD - 1})")
        stamp(2)
    e(f"    s_mov_b32 s{s_cnt}, {NIT-1}")
    dispatcher("k", "L_k_last")
    def kb(R, m):
        k_iter(1, R)
        if stamps:
            e(f"    s_cmp_eq_u32 s{s_cnt}, {NIT - 1 - NIT//2}")
            e(f"    s_cbranch_scc0 L_ns1_{m}")
            stamp(4)
            e(f"L_ns1_{m}:")
    bodies("k", kb)
    e("L_k_last:                                       ; its prefetch runs into V")
    k_iter(NIT - 1, [Rn] * 8)
    stamp(6)
    e(f"    buffer_load_dwordx4 v[{v_KT}:{v_KT+3}], v{v_offK}, s[{s_KT}:{s_KT+3}], 0 offen")
    e(f"    v_and_b32 v{X[0]}, 0xf0, v{v_offV}")
    e(f"    buffer_load_dwordx4 v[{v_VT}:{v_VT+3}], v{X[0]}, s[{s_VT}:{s_VT+3}], 0 offen")
    e(f"    v_subrev_u32 v{v_sa}, {NIT*S_it}, v{v_sa}")
    e(f"    ds_read_b64 v[{v_Sn}:{v_Sn+1}], v{v_sa}")
    def allreduce(reg, op):
        e(f"    {op}_dpp v{reg}, v{reg}, v{reg} quad_perm:[1,0,3,2] {DPPF}")
        e("    s_nop 1")
        e(f"    {op}_dpp v{reg}, v{reg}, v{reg} quad_perm:[2,3,0,1] {DPPF}")
        e("    s_nop 0")
        e(f"    v_mov_b32 v{X[0]}, v{reg}")
        e("    s_nop 1")
        e(f"    v_permlane16_swap_b32 v{X[0]}, v{reg}")
        e("    s_nop 1")
        e(f"    {op} v{reg}, v{reg}, v{X[0]}")
        e("    s_nop 0")
        e(f"    v_mov_b32 v{X[0]}, v{reg}")
        e("    s_nop 1")
        e(f"    v_permlane32_swap_b32 v{X[0]}, v{reg}")
        e("    s_nop 1")
        e(f"    {op} v{reg}, v{reg}, v{X[0]}")
    c("true max of this wave's keys, per head")
    allreduce(v_max, "v_max_f32")
    e(f"    v_mul_f32 v{v_max}, s{s_c}, v{v_max}")
    def mkP(regs, dsts):
        for r in regs: e(f"    v_fma_f32 v{r}, v{r}, s{s_c}, -v{v_max}")
        for r in regs: e(f"    v_exp_f32 v{r}, v{r}")
        e("    s_nop 0")
        for r in regs: e(f"    v_add_f32 v{v_sum}, v{v_sum}, v{r}")
        for r, d in zip(regs, dsts):
            if d is not None: e(f"    v_cvt_pk_bf16_f32 v{d}, v{r}, v{r}")
    e("    s_waitcnt lgkmcnt(0)")
    mkP([v_Sn, v_Sn + 1], [v_P, v_P + 1])
    def andP(A, P, qq):
        e(f"    v_and_b32_dpp v{A}, v{P}, v{v_m0} quad_perm:[{qq},{qq},{qq},{qq}] {DPPF}")
        e(f"    v_and_b32_dpp v{A+1}, v{P}, v{v_m1} quad_perm:[{qq},{qq},{qq},{qq}] {DPPF}")
    def mf(A, sl):
        e(f"    v_mfma_f32_16x16x16_bf16 v[{v_acc}:{v_acc+3}], v[{A}:{A+1}], v[{sl}:{sl+1}], v[{v_acc}:{v_acc+3}]")
        e(f"    v_mfma_f32_16x16x16_bf16 v[{v_acc+4}:{v_acc+7}], v[{A}:{A+1}], v[{sl+2}:{sl+3}], v[{v_acc+4}:{v_acc+7}]")
    def v_iter(it, R, first=False):
        cur["hi"] = None
        e(f"    v_add_u32 v{v_sa}, {S_it}, v{v_sa}")
        e(f"    ds_read_b64 v[{v_Sn}:{v_Sn+1}], v{v_sa}")
        for p in range(U):
            j = it * U + p; i = NL + j
            A = v_A + 2 * (p & 1)
            andP(A, v_P + p // 4, p % 4)
            n = R[p] - 1 + (2 if (first and p < R[p]) else 0)
            e(f"    s_waitcnt vmcnt({n})")
            load(i + PD)
            mf(A, slot_of(i))
            if p == 5:
                e("    s_waitcnt lgkmcnt(0)")
                mkP([v_Sn, v_Sn + 1], [v_P, None])
            if p == 7:
                e(f"    v_cvt_pk_bf16_f32 v{v_P+1}, v{v_Sn+1}, v{v_Sn+1}")
    assert Rn + 1 <= 7
    e("; ---- V phase")
    v_iter(0, [Rn] * 8, first=True)
    c("tree token: logit in log2 units incl. (1 - mask) * -1e9, as a fifth (max, sum = 1) pair")
    e(f"    v_mfma_f32_16x16x32_bf16 v[{D(0,0)}:{D(0,3)}], v[{v_KT}:{v_KT+3}], v[{v_Q}:{v_Q+3}], 0")
    e(f"    s_bitcmp1_b32 s2, 3")
    e(f"    s_cselect_b32 s{s_tmp}, 0, 16")
    e(f"    s_lshl_b32 s{s_mask}, s{s_mask}, s{s_tmp}")
    e(f"    s_and_b32 s{s_mask}, s{s_mask}, 0xffff0000")
    e(f"    s_mov_b32 s{s_cnt}, {NIT-2}")
    e("    s_nop 4")
    e(f"    v_cndmask_b32 v{X[0]}, v{D(0,0)}, v{D(0,1)}, s[{s_M1}:{s_M1+1}]")
    e(f"    v_cndmask_b32 v{X[0]}, v{X[0]}, v{D(0,2)}, s[{s_M2}:{s_M2+1}]")
    e(f"    v_cndmask_b32 v{X[0]}, v{X[0]}, v{D(0,3)}, s[{s_M3}:{s_M3+1}]")
    e(f"    v_mov_b32 v{X[1]}, s{s_mask}")
    e(f"    v_sub_f32 v{X[1]}, 1.0, v{X[1]}")
    e(f"    v_add_f32_dpp v{X[0]}, v{X[0]}, v{X[0]} quad_perm:[1,0,3,2] {DPPF}")
    e(f"    v_mul_f32 v{X[1]}, 0x{f2u(-1e9*1.4426950408889634):08x}, v{X[1]}")
    e(f"    s_nop 0")
    e(f"    v_add_f32_dpp v{X[0]}, v{X[0]}, v{X[0]} quad_perm:[2,3,0,1] {DPPF}")
    e(f"    s_nop 0")
    e(f"    v_fma_f32 v{v_KT}, v{X[0]}, s{s_c}, v{X[1]}")
    e(f"    v_mov_b32 v{v_KT+1}, 1.0")
    dispatcher("v", "L_v_last")
    def vb(R, m):
        v_iter(1, R)
        if stamps:
            e(f"    s_cmp_eq_u32 s{s_cnt}, {NIT - 2 - (NIT//2 - 1)}")
            e(f"    s_cbranch_scc0 L_ns2_{m}")
            stamp(8)
            e(f"L_ns2_{m}:")
    bodies("v", vb)
    e("L_v_last:                                       ; last 8 positions: one load left, merge factors meanwhile")
    stamp(9)
    cur["hi"] = None
    load(total - 1)
    e("    s_nop 1")
    allreduce(v_sum, "v_add_f32")
    e(f"    v_and_b32 v{X[0]}, 12, v{v_lane}")
    e(f"    v_lshlrev_b32 v{X[0]}, 1, v{X[0]}")
    e(f"    s_lshl_b32 s{s_tmp}, s{s_w}, 5")
    e(f"    v_add_u32 v{X[1]}, s{s_tmp}, v{X[0]}")
    e(f"    s_mov_b64 exec, 0x1111")
    e(f"    ds_write_b64 v{X[1]}, v[{v_max}:{v_max+1}] offset:{lds_ml}")
    e(f"    s_cmp_lg_u32 s{s_w}, 0")
    e(f"    s_cbranch_scc1 L_notree")
    e(f"    ds_write_b64 v{X[0]}, v[{v_KT}:{v_KT+1}] offset:{lds_ml + W*32}")
    e("L_notree:")
    e(f"    s_mov_b64 exec, -1")
    e(f"    v_lshrrev_b32 v{X[0]}, 4, v{v_lane}")
    e(f"    v_lshlrev_b32 v{X[0]}, 3, v{X[0]}")
    e(f"    v_add_u32 v{X[1]}, s{s_tmp}, v{X[0]}")
    e("    s_waitcnt lgkmcnt(0)")
    e("    s_barrier")
    for w in range(W + 1):
        e(f"    ds_read_b64 v[{v_ml+2*w}:{v_ml+2*w+1}], v{X[0]} offset:{lds_ml + w*32}")
    e(f"    ds_read_b32 v{v_g}, v{X[1]} offset:{lds_ml}")
    for k in range(4):
        e(f"    v_lshlrev_b32 v{v_tv+2*k}, 16, v{v_VT+k}")
        e(f"    v_and_b32 v{v_tv+2*k+1}, 0xffff0000, v{v_VT+k}")
    e("    s_waitcnt lgkmcnt(0)")
    c("overall max M, denominator L; own factor 2^(m_w - M) / L; wave 0 also carries the tree token")
    e(f"    v_max_f32 v{X[2]}, v{v_ml}, v{v_ml+2}")
    for w in range(2, W + 1): e(f"    v_max_f32 v{X[2]}, v{X[2]}, v{v_ml+2*w}")
    for w in range(W + 1): e(f"    v_sub_f32 v{v_ml+2*w}, v{v_ml+2*w}, v{X[2]}")
    e(f"    v_sub_f32 v{v_g}, v{v_g}, v{X[2]}")
    for w in range(W + 1): e(f"    v_exp_f32 v{v_ml+2*w}, v{v_ml+2*w}")
    e(f"    v_exp_f32 v{v_g}, v{v_g}")
    e(f"    v_mul_f32 v{X[3]}, v{v_ml}, v{v_ml+1}")
    for w in range(1, W + 1): e(f"    v_fmac_f32 v{X[3]}, v{v_ml+2*w}, v{v_ml+2*w+1}")
    e(f"    v_rcp_f32 v{X[3]}, v{X[3]}")
    e(f"    s_cmp_eq_u32 s{s_w}, 0")
    e(f"    s_cselect_b32 s{s_tmp}, 1.0, 0")
    e(f"    v_mul_f32 v{v_g}, v{v_g}, v{X[3]}")
    e(f"    v_mul_f32 v{X[3]}, v{v_ml+2*W}, v{X[3]}")
    e(f"    v_mul_f32 v{X[3]}, s{s_tmp}, v{X[3]}")
    for k in range(8): e(f"    v_mul_f32 v{v_tv+k}, v{X[3]}, v{v_tv+k}")
    e(f"    s_lshl_b32 s{s_tmp}, s{s_w}, 11")
    e(f"    v_lshlrev_b32 v{X[2]}, 5, v{v_lane}")
    e(f"    v_add_u32 v{X[2]}, s{s_tmp}, v{X[2]}")
    e(f"    s_lshl_b32 s{s_tmp}, s{s_w}, 9")
    e(f"    v_lshlrev_b32 v{X[3]}, 3, v{v_lane}")
    e(f"    v_add_u32 v{X[3]}, s{s_tmp}, v{X[3]}")
    e(f"    v_lshrrev_b32 v{v_sa}, 1, v{X[3]}")
    for p in range(8):
        i = total - 8 + p
        A = v_A + 2 * (p & 1)
        andP(A, v_P + p // 4, p % 4)
        e(f"    s_waitcnt vmcnt({7 - p})")
        e("    s_nop 0")
        mf(A, slot_of(i))
    stamp(10)
    e("    s_nop 6")
    c("scaled partial outputs (lane = head, 8 dims) -> LDS; wave h adds up head h and stores it")
    for k in range(8):
        e(f"    v_fma_f32 v{v_acc+k}, v{v_acc+k}, v{v_g}, v{v_tv+k}")
        if k == 3: e(f"    ds_write_b128 v{X[2]}, v[{v_acc}:{v_acc+3}] offset:{lds_O}")
    e(f"    ds_write_b128 v{X[2]}, v[{v_acc+4}:{v_acc+7}] offset:{lds_O+16}")
    e("    s_waitcnt lgkmcnt(0)")
    e("    s_barrier")
    for w in range(W):
        e(f"    ds_read_b64 v[{v_D+2*w}:{v_D+2*w+1}], v{X[3]} offset:{lds_O + w*2048}")
    e("    s_waitcnt lgkmcnt(2)")
    e(f"    v_add_f32 v{v_D}, v{v_D}, v{v_D+2}")
    e(f"    v_add_f32 v{v_D+1}, v{v_D+1}, v{v_D+3}")
    e("    s_waitcnt lgkmcnt(0)")
    e(f"    v_add_f32 v{v_D+4}, v{v_D+4}, v{v_D+6}")
    e(f"    v_add_f32 v{v_D+5}, v{v_D+5}, v{v_D+7}")
    e(f"    v_add_f32 v{v_D}, v{v_D}, v{v_D+4}")
    e(f"    v_add_f32 v{v_D+1}, v{v_D+1}, v{v_D+5}")
    e(f"    v_cvt_pk_bf16_f32 v{v_D}, v{v_D}, v{v_D+1}")
    e(f"    buffer_store_dword v{v_D}, v{v_sa}, s[{s_O}:{s_O+3}], 0 offen")
    if stamps:
        e("    s_memrealtime s[82:83]")
        e("    s_waitcnt lgkmcnt(0)")
        for k in (3, 5, 7):
            e(f"    s_mov_b32 s{60+2*k}, 0")
            e(f"    s_mov_b32 s{61+2*k}, 0")
        e(f"    s_mul_i32 s{s_tmp}, s88, {W}")
        e(f"    s_add_u32 s{s_tmp}, s{s_tmp}, s{s_w}")
        e(f"    s_lshl_b32 s{s_tmp}, s{s_tmp}, 7")
        e(f"    s_add_u32 s92, s90, s{s_tmp}")
        e(f"    s_addc_u32 s93, s91, 0")
        e(f"    s_mov_b32 s94, 128")
        e(f"    s_mov_b32 s95, 0x20000")
        e(f"    s_getreg_b32 s84, hwreg(HW_REG_XCC_ID)")
        e(f"    s_getreg_b32 s85, hwreg(HW_REG_HW_ID)")
        e(f"    s_mov_b32 s87, s{s_base}")
        for k in range(28): e(f"    v_mov_b32 v{v_ring+k}, s{60+k}")
        e(f"    v_mov_b32 v{v_lane}, 0")
        e(f"    s_mov_b64 exec, 1")
        for k in range(7):
            e(f"    buffer_store_dwordx4 v[{v_ring+4*k}:{v_ring+4*k+3}], v{v_lane}, s[92:95], 0 offen offset:{16*k}")
    e("L_end:")
    e("    s_endpgm")
    h_ws = 4; h_X = 8; h_c = 12; h_t = 13; h_row = 14; h_bud = 15; h_a = 16; h_b = 17; h_n = 18; h_gc = 19
    h_I = 21; h_S = 23; h_G = 24; h_off = 28; h_gr = 29; h_gn = 30; h_gm = 31
    e("; ---- helper wave: reference time of every second checkpoint = mean over the (up to 16) publishing")
    e("; workgroups on this die, shifted by the die's offset from the other dies (only speed depends on it)")
    e("L_helper:")
    e(f"    s_waitcnt lgkmcnt(0)")
    e(f"    s_load_dwordx2 s[{h_ws}:{h_ws+1}], s[0:1], 64")
    e(f"    v_lshlrev_b32 v2, 2, v{v_lane}")
    e(f"    v_mov_b32 v3, 0")
    e(f"    v_mov_b32 v4, -1")
    e(f"    ds_write_b32 v2, v3 offset:{lds_T}")
    e(f"    ds_write_b32 v3, v4 offset:{lds_R}")
    e(f"    s_getreg_b32 s{h_a}, hwreg(HW_REG_XCC_ID, 0, 3)")
    e(f"    s_lshl_b32 s{h_a}, s{h_a}, 13")
    e(f"    s_add_u32 s{h_a}, s{h_a}, 0x400000")
    e(f"    s_waitcnt lgkmcnt(0)")
    e("    s_barrier")
    e(f"    s_add_u32 s{h_X}, s{h_ws}, s{h_a}                       ; rows of this die: 128 B per checkpoint")
    e(f"    s_addc_u32 s{h_X+1}, s{h_ws+1}, 0")
    e(f"    s_mov_b32 s{h_X+2}, 8192")
    e(f"    s_mov_b32 s{h_X+3}, 0x20000")
    e(f"    s_add_u32 s{h_G}, s{h_ws}, 0x420000")
    e(f"    s_addc_u32 s{h_G+1}, s{h_ws+1}, 0")
    e(f"    s_mov_b32 s{h_G+2}, 0x8000")
    e(f"    s_mov_b32 s{h_G+3}, 0x20000")
    e(f"    v_and_b32 v14, 7, v{v_lane}")
    e(f"    v_lshlrev_b32 v14, 7, v14")
    e(f"    s_and_b32 s{h_a}, s2, 7")
    e(f"    s_lshl_b32 s{h_a}, s{h_a}, 7")
    e(f"    v_mov_b32 v15, s{h_a}")
    for r in (h_off, h_I, h_S, h_gr, h_gn, h_gm, h_gc, h_c, h_row): e(f"    s_mov_b32 s{r}, 0")
    e(f"    v_and_b32 v5, 60, v2")
    e(f"    s_lshr_b32 s{h_a}, s2, 3")
    e(f"    s_lshl_b32 s{h_a}, s{h_a}, 2")
    e(f"    v_mov_b32 v6, s{h_a}")
    e(f"    s_mov_b32 s{h_bud}, 20000")
    e("L_h_next:")
    e(f"    s_lshl_b32 s{h_a}, s{h_c}, 2")
    e(f"    v_mov_b32 v7, s{h_a}")
    e("L_h_w1:                                         ; own checkpoint reached?")
    e(f"    ds_read_b32 v8, v7 offset:{lds_T}")
    e(f"    s_sub_u32 s{h_bud}, s{h_bud}, 1")
    e(f"    s_cbranch_scc1 L_end")
    e(f"    s_waitcnt lgkmcnt(0)")
    e(f"    v_readfirstlane_b32 s{h_t}, v8")
    e(f"    s_nop 0")
    e(f"    s_cmp_lg_u32 s{h_t}, 0")
    e(f"    s_cbranch_scc1 L_h_pub")
    e(f"    s_sleep {slp}")
    e(f"    s_branch L_h_w1")
    e("L_h_pub:")
    e(f"    s_cmp_ge_u32 s2, 128")
    e(f"    s_cbranch_scc1 L_h_w2")
    e(f"    s_cmp_ge_u32 s2, 8")
    e(f"    s_cbranch_scc1 L_h_st")
    c("workgroups 0-7: look at the other dies' means of the last exchanged checkpoint")
    e(f"    s_cmp_eq_u32 s{h_gr}, 0")
    e(f"    s_cbranch_scc1 L_h_adj")
    e(f"    buffer_load_dword v9, v14, s[{h_G}:{h_G+3}], s{h_gr} offen sc1")
    e(f"    s_waitcnt vmcnt(0)")
    e(f"    v_subrev_u32 v9, s{h_gm}, v9")
    e(f"    v_add_u32 v11, 1000, v9")
    e(f"    v_cmp_gt_u32 vcc, 2000, v11                 ; written in this launch?")
    e(f"    s_nop 1")
    e(f"    v_cndmask_b32 v9, {gfill}, v9, vcc               ; not there yet: that die is behind")
    e(f"    s_nop 1")
    e(f"    v_add_u32_dpp v9, v9, v9 quad_perm:[1,0,3,2] {DPPF}")
    e(f"    s_nop 1")
    e(f"    v_add_u32_dpp v9, v9, v9 quad_perm:[2,3,0,1] {DPPF}")
    e(f"    s_nop 1")
    e(f"    v_add_u32_dpp v9, v9, v9 row_half_mirror {DPPF}")
    e(f"    s_cmp_eq_u64 vcc, exec")
    e(f"    s_cselect_b32 s{h_gr}, 0, s{h_gr}")
    e(f"    v_readfirstlane_b32 s{h_a}, v9")
    e(f"    s_nop 0")
    e(f"    s_mul_i32 s{h_a}, s{h_a}, -2")
    e(f"    s_sub_i32 s{h_I}, s{h_a}, s{h_S}")
    e("L_h_adj:")
    e(f"    s_mul_i32 s{h_a}, s{h_I}, {kappa}")
    e(f"    s_ashr_i32 s{h_a}, s{h_a}, 3")
    e(f"    s_min_i32 s{h_a}, s{h_a}, {omax}")
    e(f"    s_max_i32 s{h_off}, s{h_a}, {-omin}")
    e(f"    s_sub_i32 s{h_a}, s{h_off}, {16*dz[1]}")
    e(f"    s_max_i32 s{h_a}, s{h_a}, 0")
    e(f"    s_add_i32 s{h_b}, s{h_off}, {16*dz[0]}")
    e(f"    s_min_i32 s{h_b}, s{h_b}, 0")
    e(f"    s_add_i32 s{h_a}, s{h_a}, s{h_b}")
    e(f"    s_mul_i32 s{h_a}, s{h_a}, {gg}")
    e(f"    s_ashr_i32 s{h_a}, s{h_a}, 5                      ; gain expected from this row's shift")
    e(f"    s_sub_i32 s{h_I}, s{h_I}, s{h_a}")
    e(f"    s_add_i32 s{h_S}, s{h_S}, s{h_a}")
    e(f"    v_subrev_u32 v8, s{h_off}, v8                   ; the shift rides on this entry of the row")
    e("L_h_st:")
    e(f"    s_mov_b64 exec, 1")
    e(f"    buffer_store_dword v8, v6, s[{h_X}:{h_X+3}], s{h_row} offen")
    e(f"    s_mov_b64 exec, -1")
    e("L_h_w2:                                         ; row complete, or own waves two checkpoints further")
    e(f"    buffer_load_dword v9, v5, s[{h_X}:{h_X+3}], s{h_row} offen sc1")
    e(f"    ds_read_b32 v10, v7 offset:{lds_T + 4*giveup}")
    e(f"    s_sub_u32 s{h_bud}, s{h_bud}, 1")
    e(f"    s_cbranch_scc1 L_end")
    e(f"    s_waitcnt vmcnt(0) lgkmcnt(0)")
    e(f"    v_subrev_u32 v9, s{h_t}, v9")
    e(f"    v_readfirstlane_b32 s{h_n}, v10")
    e(f"    v_add_u32 v11, 2000, v9")
    e(f"    v_cmp_gt_u32 vcc, 4000, v11                 ; written in this launch?")
    e(f"    s_nop 1")
    e(f"    s_cmp_eq_u64 vcc, exec")
    e(f"    s_cbranch_scc1 L_h_sum")
    e(f"    s_cmp_lg_u32 s{h_n}, 0")
    e(f"    s_cbranch_scc1 L_h_fill")
    e(f"    s_sleep {slp}")
    e(f"    s_branch L_h_w2")
    e("L_h_fill:")
    e(f"    v_cndmask_b32 v9, 0, v9, vcc")
    e("L_h_sum:")
    e(f"    s_nop 1")
    e(f"    v_add_u32_dpp v9, v9, v9 quad_perm:[1,0,3,2] {DPPF}")
    e(f"    s_nop 1")
    e(f"    v_add_u32_dpp v9, v9, v9 quad_perm:[2,3,0,1] {DPPF}")
    e(f"    s_nop 1")
    e(f"    v_add_u32_dpp v9, v9, v9 row_half_mirror {DPPF}")
    e(f"    s_nop 1")
    e(f"    v_add_u32_dpp v9, v9, v9 row_mirror {DPPF}")
    e(f"    v_mov_b32 v12, s{h_c}")
    e(f"    v_ashrrev_i32 v9, 4, v9")
    e(f"    v_add_u32 v13, s{h_t}, v9")
    e(f"    ds_write_b64 v3, v[12:13] offset:{lds_R}")
    e(f"    s_cmp_ge_u32 s2, 8")
    e(f"    s_cbranch_scc1 L_h_adv")
    e(f"    s_cmp_lg_u32 s{h_gc}, s{h_c}")
    e(f"    s_cbranch_scc1 L_h_adv")
    c("workgroups 0-7: hand the unshifted mean to the other dies now and then")
    e(f"    s_add_u32 s{h_gc}, s{h_gc}, {gp}")
    e(f"    s_mov_b32 s{h_S}, 0")
    e(f"    s_ashr_i32 s{h_a}, s{h_off}, 4")
    e(f"    v_add_u32 v16, s{h_a}, v13")
    e(f"    s_add_u32 s{h_gn}, s{h_gn}, 1024")
    e(f"    s_mov_b32 s{h_gr}, s{h_gn}")
    e(f"    v_readfirstlane_b32 s{h_gm}, v16")
    e(f"    s_mov_b64 exec, 1")
    e(f"    buffer_store_dword v16, v15, s[{h_G}:{h_G+3}], s{h_gr} offen sc0 sc1")
    e(f"    s_mov_b64 exec, -1")
    e("L_h_adv:")
    e(f"    s_add_u32 s{h_c}, s{h_c}, {cp}")
    e(f"    s_add_u32 s{h_row}, s{h_row}, 128")
    e(f"    s_cmp_le_u32 s{h_c}, {lastc}")
    e(f"    s_cbranch_scc1 L_h_next")
    e("    s_endpgm")
    e('.section .rodata,"a"')
    e(".p2align 6")
    e(f".amdhsa_kernel {kname}")
    e(f"  .amdhsa_next_free_vgpr {nv}")
    e(f"  .amdhsa_next_free_sgpr {ns}")
    e(f"  .amdhsa_accum_offset {(nv+3)//4*4}")
    e("  .amdhsa_group_segment_fixed_size 0")
    e("  .amdhsa_kernarg_size 72")
    e("  .amdhsa_user_sgpr_count 2")
    e("  .amdhsa_user_sgpr_kernarg_segment_ptr 1")
    e("  .amdhsa_system_sgpr_workgroup_id_x 1")
    e(".end_amdhsa_kernel")
    return "\n".join(out) + "\n"

if __name__ == "__main__":
    ap = argparse.ArgumentParser()
    ap.add_argument("--stamps", action="store_true")
    ap.add_argument("-o", default="/dev/stdout")
    a, _ = ap.parse_known_args()
    open(a.o, "w").write(gen(a.stamps))
```

```python
import sys, argparse, struct

NAME = "standalone__tree_speculative_verify_tree_attention_over_candidate_token_tree__sampling"
HEADER = open("cdna_kernels/%s.s.ref" % NAME).read().split("; Override launch")[0]
def f2u(x): return struct.unpack("<I", struct.pack("<f", x))[0]
DPPF = "row_mask:0xf bank_mask:0xf"

DOC = """\
; ---------------------------------------------------------------------------------------------
; The kernel is HBM bound (256 MiB of K/V read once), so everything is built around the stream.
;
;          the matching-quarter entries are picked and summed across the quad with DPP, giving
;     DRAM pages busy; workgroups with equal id%8 own whole 2 MiB runs.
;     is behind the common pace keeps 6-7 loads in flight for an iteration, one that is far ahead 4.
;     This only changes s_waitcnt depths, never the arithmetic; entries of d_ws that were not
;     written by this launch are recognised by their time and ignored; every helper loop is bounded.
; ---------------------------------------------------------------------------------------------"""

def gen(stamps=False, Rn=5, R0=6, cp=2, slp=8, giveup=2, kappa=10, gp=6, gfill=35, gg=5, dz=(30, 5), omax=960, omin=320,
        ml=(("44444444", -35, -28), ("55555555", 0, 0), ("66666666", 10, 19), ("77777777", 40, 32)), endn=2, endx=15,
        perm="j1,j2,w0,w1,j5,j0,j3,j4,j6", xm=((0, 10), (1, 17), (0, 18)), drift=3, lds_min=90000):
    kname = NAME + "_kernel"
    W = 4; C = 8; U = 8; PD = 7
    NL = 128; NIT = 16
    total = 2 * NL
    NPASS = (NIT - 1) + (NIT - 2)
    out = []; e = out.append
    c = lambda t: e("    ; " + t)
    v_z = 0; v_lane = 1; v_offK = 2; v_offV = 3; v_m0 = 4; v_m1 = 5
    v_max = 6; v_sum = 7; X = [8, 9, 10, 11]
    v_Q = 12; v_KT = 16; v_VT = 20; v_A = 24; v_acc = 28; v_D = 36
    v_sa = 52; v_hist = 53; v_Sn = 54; v_P = 56; v_mb = 58
    v_tv = 60; v_g = 68; v_ml = 70; v_ring = 80
    nv = v_ring + 4 * C
    s_B = 18; s_itc = 19; s_w = 20; s_off = 21; s_c = 22; s_mask = 23
    s_M1 = 24; s_M2 = 26; s_M3 = 28; s_cnt = 30; s_pw = 31
    s_K = 32; s_V = 36; s_Q = 40; s_KT = 44; s_VT = 48; s_O = 52
    s_X = 56; s_tmp = 57; s_t2 = 58; s_t3 = 59
    if stamps: s_now = 96; s_A = 98; s_base = 99; s_cA = 100; s_dr = 101; ns = 102
    else: s_now = 60; s_A = 62; s_base = 63; s_cA = 64; s_dr = 65; ns = 66
    S_it = 512
    lds_ml = W * NIT * S_it
    lds_O = lds_ml + 256
    lds_T = lds_O + W * 2048
    lds_R = lds_T + 256
    lds_size = max(lds_R + 64, lds_min)
    lastc = NPASS - 2 - giveup
    lastc -= lastc % cp

    pm = perm.split(",")
    def off(j): return sum(((j >> int(src[1])) & 1) << (10 + k) for k, src in enumerate(pm) if src[0] == "j")
    wbits = [10 + pm.index("w0"), 10 + pm.index("w1")]
    lom = 4095 & ~sum(1 << db for db in set(db for _, db in xm))
    def slot_of(i): return v_ring + 4 * (i % C)
    cur = {"hi": None}
    def load(i):
        isV = i >= NL
        j = i - NL if isV else i
        if j == 0:
            e(f"    s_mov_b32 s{s_itc}, 0")
            e(f"    s_mov_b32 s{s_B}, s{s_X}")
            cur["hi"] = None
        elif j % 8 == 0:
            e(f"    s_add_u32 s{s_itc}, s{s_itc}, 1")
            runs = []
            for b_ in range(4):
                ab = 10 + pm.index(f"j{b_+3}")
                if runs and runs[-1][1] + runs[-1][2] == ab: runs[-1][2] += 1
                else: runs.append([b_, ab, 1])
            first = True
            for b_, ab, n in runs:
                dst = s_B if first else s_off
                e(f"    s_bfe_u32 s{dst}, s{s_itc}, 0x{(n << 16) | b_:x}")
                e(f"    s_lshl_b32 s{dst}, s{dst}, {ab}")
                if not first: e(f"    s_or_b32 s{s_B}, s{s_B}, s{s_off}")
                first = False
            e(f"    s_xor_b32 s{s_B}, s{s_B}, s{s_X}")
            cur["hi"] = None
        o = off(j % 8); hi, lo = o & ~lom, o & lom
        so = s_B
        if hi:
            if cur["hi"] != hi: e(f"    s_xor_b32 s{s_off}, s{s_B}, 0x{hi:x}")
            cur["hi"] = hi
            so = s_off
        sl = slot_of(i); srd = s_V if isV else s_K; vo = v_offV if isV else v_offK
        e(f"    buffer_load_dwordx4 v[{sl}:{sl+3}], v{vo}, s[{srd}:{srd+3}], s{so} offen offset:{lo} nt")
    def stamp(k):
        if stamps: e(f"    s_memrealtime s[{60+2*k}:{61+2*k}]")

    e(HEADER.rstrip())
    e("; Override launch geometry by editing the next line (default: block=256,")
    e(f"; @launch grid=(256,1,1) block=({W*64+64},1,1) lds={lds_size}")
    e(DOC)
    e('.amdgcn_target "amdgcn-amd-amdhsa--gfx950"')
    e(".text")
    e(f".globl {kname}")
    e(".p2align 8")
    e(f".type {kname},@function")
    e(f"{kname}:")
    e("    s_load_dwordx16 s[4:19], s[0:1], 0")
    e(f"    s_memrealtime s[{s_now}:{s_now+1}]                  ; checkpoint 0")
    stamp(0)
    if stamps: e("    s_load_dwordx2 s[90:91], s[0:1], 64")
    e(f"    v_lshrrev_b32 v{X[0]}, 6, v0")
    e(f"    v_and_b32 v{v_lane}, 63, v0")
    e(f"    v_readfirstlane_b32 s{s_w}, v{X[0]}")
    e("    s_cmp_ge_u32 s2, 256")
    e("    s_cbranch_scc1 L_end")
    e(f"    v_lshlrev_b32 v{v_offV}, 4, v{v_lane}")
    e(f"    v_and_b32 v{X[0]}, 12, v{v_lane}")
    e(f"    v_lshlrev_b32 v{X[0]}, 6, v{X[0]}")
    e(f"    s_cmp_eq_u32 s{s_w}, {W}")
    e("    s_cbranch_scc1 L_helper")
    e(f"    s_mov_b32 s{s_pw}, s2")
    c("pair index: id bits [7:5][2:0][4:3]")
    e("    s_and_b32 s3, s2, 7")
    e("    s_lshl_b32 s3, s3, 2")
    e("    s_bfe_u32 s21, s2, 0x20003")
    e("    s_or_b32 s3, s3, s21")
    e("    s_and_b32 s2, s2, 0xe0")
    e("    s_or_b32 s2, s2, s3")
    if stamps: e(f"    s_mov_b32 s88, s{s_pw}")
    c("K / Q lane offset: key*256 + (lane>>4)*64 + (lane&3)*16, key = (lane>>2)&3")
    e(f"    v_and_b32 v{X[1]}, 48, v{v_lane}")
    e(f"    v_lshlrev_b32 v{X[1]}, 2, v{X[1]}")
    e(f"    v_and_b32 v{X[2]}, 48, v{v_offV}")
    e(f"    v_or3_b32 v{v_offK}, v{X[0]}, v{X[1]}, v{X[2]}")
    assert wbits[1] == wbits[0] + 1
    e(f"    s_lshl_b32 s{s_tmp}, s{s_w}, {wbits[0]}")
    c("the four neighbours in a 2 MiB run walk their slabs in different orders")
    for sb in (0, 1):
        msk = sum(1 << db for s_, db in xm if s_ == sb)
        e(f"    s_bitcmp1_b32 s2, {sb}")
        e(f"    s_cselect_b32 s{s_X if sb == 0 else 3}, 0x{msk:x}, 0")
    e(f"    s_xor_b32 s{s_X}, s{s_X}, s3")
    e(f"    s_lshl_b32 s3, s2, 19")
    e(f"    s_add_u32 s3, s3, s{s_tmp}")
    e(f"    s_sub_u32 s{s_K+2}, 0x80000, s{s_tmp}")
    e(f"    s_mov_b32 s{s_K+3}, 0x20000")
    e(f"    s_mov_b32 s{s_V+2}, s{s_K+2}")
    e(f"    s_mov_b32 s{s_V+3}, 0x20000")
    e(f"    s_mov_b32 s{s_Q+2}, 1024")
    e(f"    s_mov_b32 s{s_Q+3}, 0x20000")
    e(f"    s_lshl_b32 s{s_tmp}, s2, 10")
    e("    s_waitcnt lgkmcnt(0)")
    stamp(1)
    e(f"    s_add_u32 s{s_K}, s6, s3")
    e(f"    s_addc_u32 s{s_K+1}, s7, 0")
    e(f"    s_add_u32 s{s_Q}, s4, s{s_tmp}")
    e(f"    s_addc_u32 s{s_Q+1}, s5, 0")
    e(f"    buffer_load_dwordx4 v[{v_Q}:{v_Q+3}], v{v_offK}, s[{s_Q}:{s_Q+3}], 0 offen")
    for i in range(R0): load(i)
    c("the rest of the set-up runs under the first loads")
    e(f"    s_add_u32 s{s_V}, s8, s3")
    e(f"    s_addc_u32 s{s_V+1}, s9, 0")
    e(f"    s_add_u32 s{s_O}, s16, s{s_tmp}")
    e(f"    s_addc_u32 s{s_O+1}, s17, 0")
    e(f"    s_mov_b32 s{s_O+2}, 1024")
    e(f"    s_mov_b32 s{s_O+3}, 0x20000")
    e(f"    s_lshl_b32 s{s_tmp}, s2, 8")
    e(f"    s_add_u32 s{s_KT}, s10, s{s_tmp}")
    e(f"    s_addc_u32 s{s_KT+1}, s11, 0")
    e(f"    s_mov_b32 s{s_KT+2}, 256")
    e(f"    s_mov_b32 s{s_KT+3}, 0x20000")
    e(f"    s_add_u32 s{s_VT}, s12, s{s_tmp}")
    e(f"    s_addc_u32 s{s_VT+1}, s13, 0")
    e(f"    s_mov_b32 s{s_VT+2}, 256")
    e(f"    s_mov_b32 s{s_VT+3}, 0x20000")
    e(f"    s_lshr_b32 s{s_tmp}, s2, 4")
    e(f"    s_lshl_b32 s{s_tmp}, s{s_tmp}, 2")
    e(f"    s_load_dword s{s_mask}, s[14:15], s{s_tmp}")
    e(f"    s_mov_b32 s{s_c}, 0x{f2u(128**-0.5 * 1.4426950408889634):08x}                   ; D^-0.5 * log2(e)")
    for sm, val in ((s_M1, 0x22222222), (s_M2, 0x44444444), (s_M3, 0x88888888)):
        e(f"    s_mov_b32 s{sm}, 0x{val:x}")
        e(f"    s_mov_b32 s{sm+1}, 0x{val:x}")
    c("v4/v5: bf16 slot masks of the diagonal P operand (slot = lane&3)")
    e(f"    v_mov_b32 v{X[0]}, 0xffff")
    e(f"    v_mov_b32 v{X[1]}, 0xffff0000")
    e(f"    v_cndmask_b32 v{v_m0}, v{X[0]}, v{X[1]}, s[{s_M1}:{s_M1+1}]")
    e(f"    v_cndmask_b32 v{v_m0}, v{v_m0}, 0, s[{s_M2}:{s_M2+1}]")
    e(f"    v_cndmask_b32 v{v_m0}, v{v_m0}, 0, s[{s_M3}:{s_M3+1}]")
    e(f"    v_cndmask_b32 v{v_m1}, 0, v{X[0]}, s[{s_M2}:{s_M2+1}]")
    e(f"    v_cndmask_b32 v{v_m1}, v{v_m1}, v{X[1]}, s[{s_M3}:{s_M3+1}]")
    for k in range(8): e(f"    v_mov_b32 v{v_acc+k}, 0")
    e(f"    v_mov_b32 v{v_max}, 0xff7fffff")
    e(f"    v_mov_b32 v{v_sum}, 0")
    e(f"    s_mul_i32 s{s_tmp}, s{s_w}, {NIT*S_it}")
    e(f"    v_lshlrev_b32 v{v_sa}, 3, v{v_lane}")
    e(f"    v_add_u32 v{v_sa}, s{s_tmp}, v{v_sa}                    ; LDS address of this wave's scores")
    e(f"    v_mov_b32 v{v_z}, 0")
    e(f"    v_mov_b32 v{v_hist}, 0")
    e(f"    v_mov_b32 v{v_mb}, -1")
    e(f"    s_mov_b32 s{s_A}, 0")
    e(f"    s_mov_b32 s{s_cA}, 0")
    e(f"    s_mov_b32 s{s_base}, 0")
    e(f"    s_mov_b32 m0, 0")
    e(f"    s_bfe_u32 s{s_pw}, s{s_pw}, 0x10003")
    e(f"    s_add_u32 s{s_pw}, s{s_pw}, 1")
    e(f"    s_getreg_b32 s{s_dr}, hwreg(HW_REG_XCC_ID, 0, 1)")
    e(f"    s_cmp_eq_u32 s{s_dr}, 0")
    e(f"    s_cselect_b32 s{s_dr}, {drift}, 0")
    e("    s_barrier")
    for i in range(R0, PD):
        e(f"    s_waitcnt vmcnt({R0-1})")
        load(i)

    def D(m, r): return v_D + 4 * m + r
    def extract(dst):
        e("    s_nop 7")
        for s in range(4):
            e(f"    v_cndmask_b32 v{X[s]}, v{D(s,0)}, v{D((s+1)&3,1)}, s[{s_M1}:{s_M1+1}]")
        for s in range(4):
            e(f"    v_cndmask_b32 v{X[s]}, v{X[s]}, v{D((s+2)&3,2)}, s[{s_M2}:{s_M2+1}]")
        for s in (2, 3, 0, 1):
            e(f"    v_cndmask_b32 v{X[s]}, v{X[s]}, v{D((s+3)&3,3)}, s[{s_M3}:{s_M3+1}]")
        e(f"    v_add_f32_dpp v{X[2]}, v{X[3]}, v{X[2]} quad_perm:[3,0,1,2] {DPPF}")
        e(f"    s_nop 0")
        e(f"    v_add_f32_dpp v{X[0]}, v{X[1]}, v{X[0]} quad_perm:[3,0,1,2] {DPPF}")
        e(f"    s_nop 1")
        e(f"    v_add_f32_dpp v{dst}, v{X[2]}, v{X[0]} quad_perm:[2,3,0,1] {DPPF}")
        e(f"    v_max_f32 v{v_max}, v{v_max}, v{dst}")

    def k_iter(it, R):
        cur["hi"] = None
        for p in range(U):
            i = it * U + p
            e(f"    s_waitcnt vmcnt({R[p] - 1})")
            load(i + PD)
            sl = slot_of(i)
            e(f"    v_mfma_f32_16x16x32_bf16 v[{D(p%4,0)}:{D(p%4,3)}], v[{sl}:{sl+3}], v[{v_Q}:{v_Q+3}], 0")
            if p % 4 == 3: extract(v_Sn + p // 4)
        e(f"    ds_write_b64 v{v_sa}, v[{v_Sn}:{v_Sn+1}]")
        e(f"    v_add_u32 v{v_sa}, {S_it}, v{v_sa}")

    def dispatcher(tag, exit_label):
        e(f"L_{tag}_disp:")
        e(f"    s_sub_u32 s{s_cnt}, s{s_cnt}, 1")
        e(f"    s_cbranch_scc1 {exit_label}")
        c("own time at checkpoint m0 (sampled one pass ago) -> history; mailbox as read one pass ago")
        e(f"    s_waitcnt lgkmcnt(0)")
        e(f"    v_readfirstlane_b32 s{s_t2}, v{v_mb}")
        e(f"    v_readfirstlane_b32 s{s_t3}, v{v_mb+1}")
        e(f"    s_add_u32 s{s_tmp}, s{s_now}, s{s_cA}")
        e(f"    v_writelane_b32 v{v_hist}, s{s_tmp}, m0")
        e(f"    s_sub_i32 s{s_A}, s{s_A}, s{s_dr}")
        e(f"    s_cmp_lg_u32 s{s_w}, s{s_pw}")
        e(f"    s_cbranch_scc1 L_{tag}_nopub")
        e(f"    s_or_b32 s{s_tmp}, s{s_now}, 1")
        e(f"    v_mov_b32 v{X[0]}, s{s_tmp}")
        e(f"    s_lshl_b32 s{s_tmp}, m0, 2")
        e(f"    v_mov_b32 v{X[1]}, s{s_tmp}")
        e(f"    ds_write_b32 v{X[1]}, v{X[0]} offset:{lds_T}")
        e(f"L_{tag}_nopub:")
        e(f"    ds_read_b64 v[{v_mb}:{v_mb+1}], v{v_z} offset:{lds_R}")
        e(f"    s_memrealtime s[{s_now}:{s_now+1}]")
        e(f"    s_mov_b32 s{s_cA}, s{s_A}")
        e(f"    s_add_u32 m0, m0, 1")
        e(f"    s_cmp_lt_i32 s{s_t2}, 0")
        e(f"    s_cbranch_scc1 L_{tag}_pick")
        e(f"    v_readlane_b32 s{s_tmp}, v{v_hist}, s{s_t2}")
        e(f"    s_nop 0")
        e(f"    s_sub_i32 s{s_base}, s{s_tmp}, s{s_t3}")
        e(f"L_{tag}_pick:")
        c("lag behind the reference, less what deeper iterations since then should have gained")
        e(f"    s_sub_i32 s{s_tmp}, s{s_base}, s{s_A}")
        if tag == "v" and endn:
            e(f"    s_cmp_lt_u32 s{s_cnt}, {endn}")
            e(f"    s_cselect_b32 s{s_t2}, {endx}, 0")
            e(f"    s_add_i32 s{s_tmp}, s{s_tmp}, s{s_t2}")
        for m in range(len(ml) - 1, 1, -1):
            e(f"    s_cmp_gt_i32 s{s_tmp}, {ml[m][1]}")
            e(f"    s_cbranch_scc1 L_{tag}_m{m}")
        e(f"    s_cmp_lt_i32 s{s_tmp}, {ml[0][1]}")
        e(f"    s_cbranch_scc1 L_{tag}_m0")
    def bodies(tag, body):
        for m in [1, 0] + list(range(2, len(ml))):
            e(f"L_{tag}_m{m}:                                     ; {ml[m][0][0]} loads in flight")
            if ml[m][2]: e(f"    s_add_i32 s{s_A}, s{s_A}, {ml[m][2]}")
            if stamps: e(f"    s_add_u32 s86, s86, {1 << (8*m)}")
            body([int(ch) for ch in ml[m][0]], m)
            e(f"    s_branch L_{tag}_disp")

    if stamps:
        e(f"    s_mov_b32 s86, 0")
        e(f"    s_waitcnt vmcnt({PD - 1})")
        stamp(2)
    e(f"    s_mov_b32 s{s_cnt}, {NIT-1}")
    dispatcher("k", "L_k_last")
    def kb(R, m):
        k_iter(1, R)
        if stamps:
            e(f"    s_cmp_eq_u32 s{s_cnt}, {NIT - 1 - NIT//2}")
            e(f"    s_cbranch_scc0 L_ns1_{m}")
            stamp(4)
            e(f"L_ns1_{m}:")
    bodies("k", kb)
    e("L_k_last:                                       ; its prefetch runs into V")
    k_iter(NIT - 1, [Rn] * 8)
    stamp(6)
    e(f"    buffer_load_dwordx4 v[{v_KT}:{v_KT+3}], v{v_offK}, s[{s_KT}:{s_KT+3}], 0 offen")
    e(f"    v_and_b32 v{X[0]}, 0xf0, v{v_offV}")
    e(f"    buffer_load_dwordx4 v[{v_VT}:{v_VT+3}], v{X[0]}, s[{s_VT}:{s_VT+3}], 0 offen")
    e(f"    v_subrev_u32 v{v_sa}, {NIT*S_it}, v{v_sa}")
    e(f"    ds_read_b64 v[{v_Sn}:{v_Sn+1}], v{v_sa}")
    def allreduce(reg, op):
        e(f"    {op}_dpp v{reg}, v{reg}, v{reg} quad_perm:[1,0,3,2] {DPPF}")
        e("    s_nop 1")
        e(f"    {op}_dpp v{reg}, v{reg}, v{reg} quad_perm:[2,3,0,1] {DPPF}")
        e("    s_nop 0")
        e(f"    v_mov_b32 v{X[0]}, v{reg}")
        e("    s_nop 1")
        e(f"    v_permlane16_swap_b32 v{X[0]}, v{reg}")
        e("    s_nop 1")
        e(f"    {op} v{reg}, v{reg}, v{X[0]}")
        e("    s_nop 0")
        e(f"    v_mov_b32 v{X[0]}, v{reg}")
        e("    s_nop 1")
        e(f"    v_permlane32_swap_b32 v{X[0]}, v{reg}")
        e("    s_nop 1")
        e(f"    {op} v{reg}, v{reg}, v{X[0]}")
    c("true max of this wave's keys, per head")
    allreduce(v_max, "v_max_f32")
    e(f"    v_mul_f32 v{v_max}, s{s_c}, v{v_max}")
    def mkP(regs, dsts):
        for r in regs: e(f"    v_fma_f32 v{r}, v{r}, s{s_c}, -v{v_max}")
        for r in regs: e(f"    v_exp_f32 v{r}, v{r}")
        e("    s_nop 0")
        for r in regs: e(f"    v_add_f32 v{v_sum}, v{v_sum}, v{r}")
        for r, d in zip(regs, dsts):
            if d is not None: e(f"    v_cvt_pk_bf16_f32 v{d}, v{r}, v{r}")
    e("    s_waitcnt lgkmcnt(0)")
    mkP([v_Sn, v_Sn + 1], [v_P, v_P + 1])
    def andP(A, P, qq):
        e(f"    v_and_b32_dpp v{A}, v{P}, v{v_m0} quad_perm:[{qq},{qq},{qq},{qq}] {DPPF}")
        e(f"    v_and_b32_dpp v{A+1}, v{P}, v{v_m1} quad_perm:[{qq},{qq},{qq},{qq}] {DPPF}")
    def mf(A, sl):
        e(f"    v_mfma_f32_16x16x16_bf16 v[{v_acc}:{v_acc+3}], v[{A}:{A+1}], v[{sl}:{sl+1}], v[{v_acc}:{v_acc+3}]")
        e(f"    v_mfma_f32_16x16x16_bf16 v[{v_acc+4}:{v_acc+7}], v[{A}:{A+1}], v[{sl+2}:{sl+3}], v[{v_acc+4}:{v_acc+7}]")
    def v_iter(it, R, first=False):
        cur["hi"] = None
        e(f"    v_add_u32 v{v_sa}, {S_it}, v{v_sa}")
        e(f"    ds_read_b64 v[{v_Sn}:{v_Sn+1}], v{v_sa}")
        for p in range(U):
            j = it * U + p; i = NL + j
            A = v_A + 2 * (p & 1)
            andP(A, v_P + p // 4, p % 4)
            n = R[p] - 1 + (2 if (first and p < R[p]) else 0)
            e(f"    s_waitcnt vmcnt({n})")
            load(i + PD)
            mf(A, slot_of(i))
            if p == 5:
                e("    s_waitcnt lgkmcnt(0)")
                mkP([v_Sn, v_Sn + 1], [v_P, None])
            if p == 7:
                e(f"    v_cvt_pk_bf16_f32 v{v_P+1}, v{v_Sn+1}, v{v_Sn+1}")
    assert Rn + 1 <= 7
    e("; ---- V phase")
    v_iter(0, [Rn] * 8, first=True)
    c("tree token: logit in log2 units incl. (1 - mask) * -1e9, as a fifth (max, sum = 1) pair")
    e(f"    v_mfma_f32_16x16x32_bf16 v[{D(0,0)}:{D(0,3)}], v[{v_KT}:{v_KT+3}], v[{v_Q}:{v_Q+3}], 0")
    e(f"    s_bitcmp1_b32 s2, 3")
    e(f"    s_cselect_b32 s{s_tmp}, 0, 16")
    e(f"    s_lshl_b32 s{s_mask}, s{s_mask}, s{s_tmp}")
    e(f"    s_and_b32 s{s_mask}, s{s_mask}, 0xffff0000")
    e(f"    s_mov_b32 s{s_cnt}, {NIT-2}")
    e("    s_nop 4")
    e(f"    v_cndmask_b32 v{X[0]}, v{D(0,0)}, v{D(0,1)}, s[{s_M1}:{s_M1+1}]")
    e(f"    v_cndmask_b32 v{X[0]}, v{X[0]}, v{D(0,2)}, s[{s_M2}:{s_M2+1}]")
    e(f"    v_cndmask_b32 v{X[0]}, v{X[0]}, v{D(0,3)}, s[{s_M3}:{s_M3+1}]")
    e(f"    v_mov_b32 v{X[1]}, s{s_mask}")
    e(f"    v_sub_f32 v{X[1]}, 1.0, v{X[1]}")
    e(f"    v_add_f32_dpp v{X[0]}, v{X[0]}, v{X[0]} quad_perm:[1,0,3,2] {DPPF}")
    e(f"    v_mul_f32 v{X[1]}, 0x{f2u(-1e9*1.4426950408889634):08x}, v{X[1]}")
    e(f"    s_nop 0")
    e(f"    v_add_f32_dpp v{X[0]}, v{X[0]}, v{X[0]} quad_perm:[2,3,0,1] {DPPF}")
    e(f"    s_nop 0")
    e(f"    v_fma_f32 v{v_KT}, v{X[0]}, s{s_c}, v{X[1]}")
    e(f"    v_mov_b32 v{v_KT+1}, 1.0")
    dispatcher("v", "L_v_last")
    def vb(R, m):
        v_iter(1, R)
        if stamps:
            e(f"    s_cmp_eq_u32 s{s_cnt}, {NIT - 2 - (NIT//2 - 1)}")
            e(f"    s_cbranch_scc0 L_ns2_{m}")
            stamp(8)
            e(f"L_ns2_{m}:")
    bodies("v", vb)
    e("L_v_last:                                       ; last 8 positions: one load left, merge factors meanwhile")
    stamp(9)
    cur["hi"] = None
    load(total - 1)
    e("    s_nop 1")
    allreduce(v_sum, "v_add_f32")
    e(f"    v_and_b32 v{X[0]}, 12, v{v_lane}")
    e(f"    v_lshlrev_b32 v{X[0]}, 1, v{X[0]}")
    e(f"    s_lshl_b32 s{s_tmp}, s{s_w}, 5")
    e(f"    v_add_u32 v{X[1]}, s{s_tmp}, v{X[0]}")
    e(f"    s_mov_b64 exec, 0x1111")
    e(f"    ds_write_b64 v{X[1]}, v[{v_max}:{v_max+1}] offset:{lds_ml}")
    e(f"    s_cmp_lg_u32 s{s_w}, 0")
    e(f"    s_cbranch_scc1 L_notree")
    e(f"    ds_write_b64 v{X[0]}, v[{v_KT}:{v_KT+1}] offset:{lds_ml + W*32}")
    e("L_notree:")
    e(f"    s_mov_b64 exec, -1")
    e(f"    v_lshrrev_b32 v{X[0]}, 4, v{v_lane}")
    e(f"    v_lshlrev_b32 v{X[0]}, 3, v{X[0]}")
    e(f"    v_add_u32 v{X[1]}, s{s_tmp}, v{X[0]}")
    e("    s_waitcnt lgkmcnt(0)")
    e("    s_barrier")
    for w in range(W + 1):
        e(f"    ds_read_b64 v[{v_ml+2*w}:{v_ml+2*w+1}], v{X[0]} offset:{lds_ml + w*32}")
    e(f"    ds_read_b32 v{v_g}, v{X[1]} offset:{lds_ml}")
    for k in range(4):
        e(f"    v_lshlrev_b32 v{v_tv+2*k}, 16, v{v_VT+k}")
        e(f"    v_and_b32 v{v_tv+2*k+1}, 0xffff0000, v{v_VT+k}")
    e("    s_waitcnt lgkmcnt(0)")
    c("overall max M, denominator L; own factor 2^(m_w - M) / L; wave 0 also carries the tree token")
    e(f"    v_max_f32 v{X[2]}, v{v_ml}, v{v_ml+2}")
    for w in range(2, W + 1): e(f"    v_max_f32 v{X[2]}, v{X[2]}, v{v_ml+2*w}")
    for w in range(W + 1): e(f"    v_sub_f32 v{v_ml+2*w}, v{v_ml+2*w}, v{X[2]}")
    e(f"    v_sub_f32 v{v_g}, v{v_g}, v{X[2]}")
    for w in range(W + 1): e(f"    v_exp_f32 v{v_ml+2*w}, v{v_ml+2*w}")
    e(f"    v_exp_f32 v{v_g}, v{v_g}")
    e(f"    v_mul_f32 v{X[3]}, v{v_ml}, v{v_ml+1}")
    for w in range(1, W + 1): e(f"    v_fmac_f32 v{X[3]}, v{v_ml+2*w}, v{v_ml+2*w+1}")
    e(f"    v_rcp_f32 v{X[3]}, v{X[3]}")
    e(f"    s_cmp_eq_u32 s{s_w}, 0")
    e(f"    s_cselect_b32 s{s_tmp}, 1.0, 0")
    e(f"    v_mul_f32 v{v_g}, v{v_g}, v{X[3]}")
    e(f"    v_mul_f32 v{X[3]}, v{v_ml+2*W}, v{X[3]}")
    e(f"    v_mul_f32 v{X[3]}, s{s_tmp}, v{X[3]}")
    for k in range(8): e(f"    v_mul_f32 v{v_tv+k}, v{X[3]}, v{v_tv+k}")
    e(f"    s_lshl_b32 s{s_tmp}, s{s_w}, 11")
    e(f"    v_lshlrev_b32 v{X[2]}, 5, v{v_lane}")
    e(f"    v_add_u32 v{X[2]}, s{s_tmp}, v{X[2]}")
    e(f"    s_lshl_b32 s{s_tmp}, s{s_w}, 9")
    e(f"    v_lshlrev_b32 v{X[3]}, 3, v{v_lane}")
    e(f"    v_add_u32 v{X[3]}, s{s_tmp}, v{X[3]}")
    e(f"    v_lshrrev_b32 v{v_sa}, 1, v{X[3]}")
    for p in range(8):
        i = total - 8 + p
        A = v_A + 2 * (p & 1)
        andP(A, v_P + p // 4, p % 4)
        e(f"    s_waitcnt vmcnt({7 - p})")
        e("    s_nop 0")
        mf(A, slot_of(i))
    stamp(10)
    e("    s_nop 6")
    c("scaled partial outputs (lane = head, 8 dims) -> LDS; wave h adds up head h and stores it")
    for k in range(8):
        e(f"    v_fma_f32 v{v_acc+k}, v{v_acc+k}, v{v_g}, v{v_tv+k}")
        if k == 3: e(f"    ds_write_b128 v{X[2]}, v[{v_acc}:{v_acc+3}] offset:{lds_O}")
    e(f"    ds_write_b128 v{X[2]}, v[{v_acc+4}:{v_acc+7}] offset:{lds_O+16}")
    e("    s_waitcnt lgkmcnt(0)")
    e("    s_barrier")
    for w in range(W):
        e(f"    ds_read_b64 v[{v_D+2*w}:{v_D+2*w+1}], v{X[3]} offset:{lds_O + w*2048}")
    e("    s_waitcnt lgkmcnt(2)")
    e(f"    v_add_f32 v{v_D}, v{v_D}, v{v_D+2}")
    e(f"    v_add_f32 v{v_D+1}, v{v_D+1}, v{v_D+3}")
    e("    s_waitcnt lgkmcnt(0)")
    e(f"    v_add_f32 v{v_D+4}, v{v_D+4}, v{v_D+6}")
    e(f"    v_add_f32 v{v_D+5}, v{v_D+5}, v{v_D+7}")
    e(f"    v_add_f32 v{v_D}, v{v_D}, v{v_D+4}")
    e(f"    v_add_f32 v{v_D+1}, v{v_D+1}, v{v_D+5}")
    e(f"    v_cvt_pk_bf16_f32 v{v_D}, v{v_D}, v{v_D+1}")
    e(f"    buffer_store_dword v{v_D}, v{v_sa}, s[{s_O}:{s_O+3}], 0 offen")
    if stamps:
        e("    s_memrealtime s[82:83]")
        e("    s_waitcnt lgkmcnt(0)")
        for k in (3, 5, 7):
            e(f"    s_mov_b32 s{60+2*k}, 0")
            e(f"    s_mov_b32 s{61+2*k}, 0")
        e(f"    s_mul_i32 s{s_tmp}, s88, {W}")
        e(f"    s_add_u32 s{s_tmp}, s{s_tmp}, s{s_w}")
        e(f"    s_lshl_b32 s{s_tmp}, s{s_tmp}, 7")
        e(f"    s_add_u32 s92, s90, s{s_tmp}")
        e(f"    s_addc_u32 s93, s91, 0")
        e(f"    s_mov_b32 s94, 128")
        e(f"    s_mov_b32 s95, 0x20000")
        e(f"    s_getreg_b32 s84, hwreg(HW_REG_XCC_ID)")
        e(f"    s_getreg_b32 s85, hwreg(HW_REG_HW_ID)")
        e(f"    s_mov_b32 s87, s{s_base}")
        for k in range(28): e(f"    v_mov_b32 v{v_ring+k}, s{60+k}")
        e(f"    v_mov_b32 v{v_lane}, 0")
        e(f"    s_mov_b64 exec, 1")
        for k in range(7):
            e(f"    buffer_store_dwordx4 v[{v_ring+4*k}:{v_ring+4*k+3}], v{v_lane}, s[92:95], 0 offen offset:{16*k}")
    e("L_end:")
    e("    s_endpgm")
    h_ws = 4; h_X = 8; h_c = 12; h_t = 13; h_row = 14; h_bud = 15; h_a = 16; h_b = 17; h_n = 18; h_gc = 19
    h_I = 21; h_S = 23; h_G = 24; h_off = 28; h_gr = 29; h_gn = 30; h_gm = 31
    e("; ---- helper wave: reference time of every second checkpoint = mean over the (up to 16) publishing")
    e("; workgroups on this die, shifted by the die's offset from the other dies (only speed depends on it)")
    e("L_helper:")
    e(f"    s_waitcnt lgkmcnt(0)")
    e(f"    s_load_dwordx2 s[{h_ws}:{h_ws+1}], s[0:1], 64")
    e(f"    v_lshlrev_b32 v2, 2, v{v_lane}")
    e(f"    v_mov_b32 v3, 0")
    e(f"    v_mov_b32 v4, -1")
    e(f"    ds_write_b32 v2, v3 offset:{lds_T}")
    e(f"    ds_write_b32 v3, v4 offset:{lds_R}")
    e(f"    s_getreg_b32 s{h_a}, hwreg(HW_REG_XCC_ID, 0, 3)")
    e(f"    s_lshl_b32 s{h_a}, s{h_a}, 13")
    e(f"    s_add_u32 s{h_a}, s{h_a}, 0x400000")
    e(f"    s_waitcnt lgkmcnt(0)")
    e("    s_barrier")
    e(f"    s_add_u32 s{h_X}, s{h_ws}, s{h_a}                       ; rows of this die: 128 B per checkpoint")
    e(f"    s_addc_u32 s{h_X+1}, s{h_ws+1}, 0")
    e(f"    s_mov_b32 s{h_X+2}, 8192")
    e(f"    s_mov_b32 s{h_X+3}, 0x20000")
    e(f"    s_add_u32 s{h_G}, s{h_ws}, 0x420000")
    e(f"    s_addc_u32 s{h_G+1}, s{h_ws+1}, 0")
    e(f"    s_mov_b32 s{h_G+2}, 0x8000")
    e(f"    s_mov_b32 s{h_G+3}, 0x20000")
    e(f"    v_and_b32 v14, 7, v{v_lane}")
    e(f"    v_lshlrev_b32 v14, 7, v14")
    e(f"    s_and_b32 s{h_a}, s2, 7")
    e(f"    s_lshl_b32 s{h_a}, s{h_a}, 7")
    e(f"    v_mov_b32 v15, s{h_a}")
    for r in (h_off, h_I, h_S, h_gr, h_gn, h_gm, h_gc, h_c, h_row): e(f"    s_mov_b32 s{r}, 0")
    e(f"    v_and_b32 v5, 60, v2")
    e(f"    s_lshr_b32 s{h_a}, s2, 3")
    e(f"    s_lshl_b32 s{h_a}, s{h_a}, 2")
    e(f"    v_mov_b32 v6, s{h_a}")
    e(f"    s_mov_b32 s{h_bud}, 20000")
    e("L_h_next:")
    e(f"    s_lshl_b32 s{h_a}, s{h_c}, 2")
    e(f"    v_mov_b32 v7, s{h_a}")
    e("L_h_w1:                                         ; own checkpoint reached?")
    e(f"    ds_read_b32 v8, v7 offset:{lds_T}")
    e(f"    s_sub_u32 s{h_bud}, s{h_bud}, 1")
    e(f"    s_cbranch_scc1 L_end")
    e(f"    s_waitcnt lgkmcnt(0)")
    e(f"    v_readfirstlane_b32 s{h_t}, v8")
    e(f"    s_nop 0")
    e(f"    s_cmp_lg_u32 s{h_t}, 0")
    e(f"    s_cbranch_scc1 L_h_pub")
    e(f"    s_sleep {slp}")
    e(f"    s_branch L_h_w1")
    e("L_h_pub:")
    e(f"    s_cmp_ge_u32 s2, 128")
    e(f"    s_cbranch_scc1 L_h_w2")
    e(f"    s_cmp_ge_u32 s2, 8")
    e(f"    s_cbranch_scc1 L_h_st")
    c("workgroups 0-7: look at the other dies' means of the last exchanged checkpoint")
    e(f"    s_cmp_eq_u32 s{h_gr}, 0")
    e(f"    s_cbranch_scc1 L_h_adj")
    e(f"    buffer_load_dword v9, v14, s[{h_G}:{h_G+3}], s{h_gr} offen sc1")
    e(f"    s_waitcnt vmcnt(0)")
    e(f"    v_subrev_u32 v9, s{h_gm}, v9")
    e(f"    v_add_u32 v11, 1000, v9")
    e(f"    v_cmp_gt_u32 vcc, 2000, v11                 ; written in this launch?")
    e(f"    s_nop 1")
    e(f"    v_cndmask_b32 v9, {gfill}, v9, vcc               ; not there yet: that die is behind")
    e(f"    s_nop 1")
    e(f"    v_add_u32_dpp v9, v9, v9 quad_perm:[1,0,3,2] {DPPF}")
    e(f"    s_nop 1")
    e(f"    v_add_u32_dpp v9, v9, v9 quad_perm:[2,3,0,1] {DPPF}")
    e(f"    s_nop 1")
    e(f"    v_add_u32_dpp v9, v9, v9 row_half_mirror {DPPF}")
    e(f"    s_cmp_eq_u64 vcc, exec")
    e(f"    s_cselect_b32 s{h_gr}, 0, s{h_gr}")
    e(f"    v_readfirstlane_b32 s{h_a}, v9")
    e(f"    s_nop 0")
    e(f"    s_mul_i32 s{h_a}, s{h_a}, -2")
    e(f"    s_sub_i32 s{h_I}, s{h_a}, s{h_S}")
    e("L_h_adj:")
    e(f"    s_mul_i32 s{h_a}, s{h_I}, {kappa}")
    e(f"    s_ashr_i32 s{h_a}, s{h_a}, 3")
    e(f"    s_min_i32 s{h_a}, s{h_a}, {omax}")
    e(f"    s_max_i32 s{h_off}, s{h_a}, {-omin}")
    e(f"    s_sub_i32 s{h_a}, s{h_off}, {16*dz[1]}")
    e(f"    s_max_i32 s{h_a}, s{h_a}, 0")
    e(f"    s_add_i32 s{h_b}, s{h_off}, {16*dz[0]}")
    e(f"    s_min_i32 s{h_b}, s{h_b}, 0")
    e(f"    s_add_i32 s{h_a}, s{h_a}, s{h_b}")
    e(f"    s_mul_i32 s{h_a}, s{h_a}, {gg}")
    e(f"    s_ashr_i32 s{h_a}, s{h_a}, 5                      ; gain expected from this row's shift")
    e(f"    s_sub_i32 s{h_I}, s{h_I}, s{h_a}")
    e(f"    s_add_i32 s{h_S}, s{h_S}, s{h_a}")
    e(f"    v_subrev_u32 v8, s{h_off}, v8                   ; the shift rides on this entry of the row")
    e("L_h_st:")
    e(f"    s_mov_b64 exec, 1")
    e(f"    buffer_store_dword v8, v6, s[{h_X}:{h_X+3}], s{h_row} offen")
    e(f"    s_mov_b64 exec, -1")
    e("L_h_w2:                                         ; row complete, or own waves two checkpoints further")
    e(f"    buffer_load_dword v9, v5, s[{h_X}:{h_X+3}], s{h_row} offen sc1")
    e(f"    ds_read_b32 v10, v7 offset:{lds_T + 4*giveup}")
    e(f"    s_sub_u32 s{h_bud}, s{h_bud}, 1")
    e(f"    s_cbranch_scc1 L_end")
    e(f"    s_waitcnt vmcnt(0) lgkmcnt(0)")
    e(f"    v_subrev_u32 v9, s{h_t}, v9")
    e(f"    v_readfirstlane_b32 s{h_n}, v10")
    e(f"    v_add_u32 v11, 2000, v9")
    e(f"    v_cmp_gt_u32 vcc, 4000, v11                 ; written in this launch?")
    e(f"    s_nop 1")
    e(f"    s_cmp_eq_u64 vcc, exec")
    e(f"    s_cbranch_scc1 L_h_sum")
    e(f"    s_cmp_lg_u32 s{h_n}, 0")
    e(f"    s_cbranch_scc1 L_h_fill")
    e(f"    s_sleep {slp}")
    e(f"    s_branch L_h_w2")
    e("L_h_fill:")
    e(f"    v_cndmask_b32 v9, 0, v9, vcc")
    e("L_h_sum:")
    e(f"    s_nop 1")
    e(f"    v_add_u32_dpp v9, v9, v9 quad_perm:[1,0,3,2] {DPPF}")
    e(f"    s_nop 1")
    e(f"    v_add_u32_dpp v9, v9, v9 quad_perm:[2,3,0,1] {DPPF}")
    e(f"    s_nop 1")
    e(f"    v_add_u32_dpp v9, v9, v9 row_half_mirror {DPPF}")
    e(f"    s_nop 1")
    e(f"    v_add_u32_dpp v9, v9, v9 row_mirror {DPPF}")
    e(f"    v_mov_b32 v12, s{h_c}")
    e(f"    v_ashrrev_i32 v9, 4, v9")
    e(f"    v_add_u32 v13, s{h_t}, v9")
    e(f"    ds_write_b64 v3, v[12:13] offset:{lds_R}")
    e(f"    s_cmp_ge_u32 s2, 8")
    e(f"    s_cbranch_scc1 L_h_adv")
    e(f"    s_cmp_lg_u32 s{h_gc}, s{h_c}")
    e(f"    s_cbranch_scc1 L_h_adv")
    c("workgroups 0-7: hand the unshifted mean to the other dies now and then")
    e(f"    s_add_u32 s{h_gc}, s{h_gc}, {gp}")
    e(f"    s_mov_b32 s{h_S}, 0")
    e(f"    s_ashr_i32 s{h_a}, s{h_off}, 4")
    e(f"    v_add_u32 v16, s{h_a}, v13")
    e(f"    s_add_u32 s{h_gn}, s{h_gn}, 1024")
    e(f"    s_mov_b32 s{h_gr}, s{h_gn}")
    e(f"    v_readfirstlane_b32 s{h_gm}, v16")
    e(f"    s_mov_b64 exec, 1")
    e(f"    buffer_store_dword v16, v15, s[{h_G}:{h_G+3}], s{h_gr} offen sc0 sc1")
    e(f"    s_mov_b64 exec, -1")
    e("L_h_adv:")
    e(f"    s_add_u32 s{h_c}, s{h_c}, {cp}")
    e(f"    s_add_u32 s{h_row}, s{h_row}, 128")
    e(f"    s_cmp_le_u32 s{h_c}, {lastc}")
    e(f"    s_cbranch_scc1 L_h_next")
    e("    s_endpgm")
    e('.section .rodata,"a"')
    e(".p2align 6")
    e(f".amdhsa_kernel {kname}")
    e(f"  .amdhsa_next_free_vgpr {nv}")
    e(f"  .amdhsa_next_free_sgpr {ns}")
    e(f"  .amdhsa_accum_offset {(nv+3)//4*4}")
    e("  .amdhsa_group_segment_fixed_size 0")
    e("  .amdhsa_kernarg_size 72")
    e("  .amdhsa_user_sgpr_count 2")
    e("  .amdhsa_user_sgpr_kernarg_segment_ptr 1")
    e("  .amdhsa_system_sgpr_workgroup_id_x 1")
    e(".end_amdhsa_kernel")
    return "\n".join(out) + "\n"

if __name__ == "__main__":
    ap = argparse.ArgumentParser()
    ap.add_argument("--stamps", action="store_true")
    ap.add_argument("-o", default="/dev/stdout")
    a, _ = ap.parse_known_args()
    open(a.o, "w").write(gen(a.stamps))
```

```python
import sys, argparse, struct

NAME = "standalone__tree_speculative_verify_tree_attention_over_candidate_token_tree__sampling"
HEADER = open("cdna_kernels/%s.s.ref" % NAME).read().split("; Override launch")[0]
def f2u(x): return struct.unpack("<I", struct.pack("<f", x))[0]
DPPF = "row_mask:0xf bank_mask:0xf"

DOC = """\
; ---------------------------------------------------------------------------------------------
; The kernel is HBM bound (256 MiB of K/V read once), so everything is built around the stream.
;
;          the matching-quarter entries are picked and summed across the quad with DPP, giving
;     DRAM pages busy; workgroups with equal id%8 own whole 2 MiB runs.
;     is behind the common pace keeps 6-7 loads in flight for an iteration, one that is far ahead 4.
;     This only changes s_waitcnt depths, never the arithmetic; entries of d_ws that were not
;     written by this launch are recognised by their time and ignored; every helper loop is bounded.
; ---------------------------------------------------------------------------------------------"""

def gen(stamps=False, Rn=5, R0=6, cp=2, slp=8, giveup=2, kappa=10, gp=6, gfill=35, gg=5, dz=(15, 5), omax=480, omin=480,
        ml=(("44444444", -35, -28), ("55555555", 0, 0), ("66666666", 10, 19), ("77777777", 40, 32)), endn=2, endx=15,
        perm="j1,j2,w0,w1,j5,j0,j3,j4,j6", xm=((0, 10), (1, 17), (0, 18)), drift=3, lds_min=90000):
    kname = NAME + "_kernel"
    W = 4; C = 8; U = 8; PD = 7
    NL = 128; NIT = 16
    total = 2 * NL
    NPASS = (NIT - 1) + (NIT - 2)
    out = []; e = out.append
    c = lambda t: e("    ; " + t)
    v_z = 0; v_lane = 1; v_offK = 2; v_offV = 3; v_m0 = 4; v_m1 = 5
    v_max = 6; v_sum = 7; X = [8, 9, 10, 11]
    v_Q = 12; v_KT = 16; v_VT = 20; v_A = 24; v_acc = 28; v_D = 36
    v_sa = 52; v_hist = 53; v_Sn = 54; v_P = 56; v_mb = 58
    v_tv = 60; v_g = 68; v_ml = 70; v_ring = 80
    nv = v_ring + 4 * C
    s_B = 18; s_itc = 19; s_w = 20; s_off = 21; s_c = 22; s_mask = 23
    s_M1 = 24; s_M2 = 26; s_M3 = 28; s_cnt = 30; s_pw = 31
    s_K = 32; s_V = 36; s_Q = 40; s_KT = 44; s_VT = 48; s_O = 52
    s_X = 56; s_tmp = 57; s_t2 = 58; s_t3 = 59
    if stamps: s_now = 96; s_A = 98; s_base = 99; s_cA = 100; s_dr = 101; ns = 102
    else: s_now = 60; s_A = 62; s_base = 63; s_cA = 64; s_dr = 65; ns = 66
    S_it = 512
    lds_ml = W * NIT * S_it
    lds_O = lds_ml + 256
    lds_T = lds_O + W * 2048
    lds_R = lds_T + 256
    lds_size = max(lds_R + 64, lds_min)
    lastc = NPASS - 2 - giveup
    lastc -= lastc % cp

    pm = perm.split(",")
    def off(j): return sum(((j >> int(src[1])) & 1) << (10 + k) for k, src in enumerate(pm) if src[0] == "j")
    wbits = [10 + pm.index("w0"), 10 + pm.index("w1")]
    lom = 4095 & ~sum(1 << db for db in set(db for _, db in xm))
    def slot_of(i): return v_ring + 4 * (i % C)
    cur = {"hi": None}
    def load(i, wait=None):
        isV = i >= NL
        j = i - NL if isV else i
        if j == 0:
            e(f"    s_mov_b32 s{s_itc}, 0")
            e(f"    s_mov_b32 s{s_B}, s{s_X}")
            cur["hi"] = None
        elif j % 8 == 0:
            e(f"    s_add_u32 s{s_itc}, s{s_itc}, 1")
            runs = []
            for b_ in range(4):
                ab = 10 + pm.index(f"j{b_+3}")
                if runs and runs[-1][1] + runs[-1][2] == ab: runs[-1][2] += 1
                else: runs.append([b_, ab, 1])
            first = True
            for b_, ab, n in runs:
                dst = s_B if first else s_off
                e(f"    s_bfe_u32 s{dst}, s{s_itc}, 0x{(n << 16) | b_:x}")
                e(f"    s_lshl_b32 s{dst}, s{dst}, {ab}")
                if not first: e(f"    s_or_b32 s{s_B}, s{s_B}, s{s_off}")
                first = False
            e(f"    s_xor_b32 s{s_B}, s{s_B}, s{s_X}")
            cur["hi"] = None
        o = off(j % 8); hi, lo = o & ~lom, o & lom
        so = s_B
        if hi:
            if cur["hi"] != hi: e(f"    s_xor_b32 s{s_off}, s{s_B}, 0x{hi:x}")
            cur["hi"] = hi
            so = s_off
        sl = slot_of(i); srd = s_V if isV else s_K; vo = v_offV if isV else v_offK
        if wait is not None: e(f"    s_waitcnt vmcnt({wait})")
        e(f"    buffer_load_dwordx4 v[{sl}:{sl+3}], v{vo}, s[{srd}:{srd+3}], s{so} offen offset:{lo} nt")
    def stamp(k):
        if stamps: e(f"    s_memrealtime s[{60+2*k}:{61+2*k}]")

    e(HEADER.rstrip())
    e("; Override launch geometry by editing the next line (default: block=256,")
    e(f"; @launch grid=(256,1,1) block=({W*64+64},1,1) lds={lds_size}")
    e(DOC)
    e('.amdgcn_target "amdgcn-amd-amdhsa--gfx950"')
    e(".text")
    e(f".globl {kname}")
    e(".p2align 8")
    e(f".type {kname},@function")
    e(f"{kname}:")
    e("    s_load_dwordx16 s[4:19], s[0:1], 0")
    e(f"    s_memrealtime s[{s_now}:{s_now+1}]                  ; checkpoint 0")
    stamp(0)
    if stamps: e("    s_load_dwordx2 s[90:91], s[0:1], 64")
    e(f"    v_lshrrev_b32 v{X[0]}, 6, v0")
    e(f"    v_and_b32 v{v_lane}, 63, v0")
    e(f"    v_readfirstlane_b32 s{s_w}, v{X[0]}")
    e("    s_cmp_ge_u32 s2, 256")
    e("    s_cbranch_scc1 L_end")
    e(f"    v_lshlrev_b32 v{v_offV}, 4, v{v_lane}")
    e(f"    v_and_b32 v{X[0]}, 12, v{v_lane}")
    e(f"    v_lshlrev_b32 v{X[0]}, 6, v{X[0]}")
    e(f"    s_cmp_eq_u32 s{s_w}, {W}")
    e("    s_cbranch_scc1 L_helper")
    e(f"    s_mov_b32 s{s_pw}, s2")
    c("pair index: id bits [7:5][2:0][4:3]")
    e("    s_and_b32 s3, s2, 7")
    e("    s_lshl_b32 s3, s3, 2")
    e("    s_bfe_u32 s21, s2, 0x20003")
    e("    s_or_b32 s3, s3, s21")
    e("    s_and_b32 s2, s2, 0xe0")
    e("    s_or_b32 s2, s2, s3")
    if stamps: e(f"    s_mov_b32 s88, s{s_pw}")
    c("K / Q lane offset: key*256 + (lane>>4)*64 + (lane&3)*16, key = (lane>>2)&3")
    e(f"    v_and_b32 v{X[1]}, 48, v{v_lane}")
    e(f"    v_lshlrev_b32 v{X[1]}, 2, v{X[1]}")
    e(f"    v_and_b32 v{X[2]}, 48, v{v_offV}")
    e(f"    v_or3_b32 v{v_offK}, v{X[0]}, v{X[1]}, v{X[2]}")
    assert wbits[1] == wbits[0] + 1
    e(f"    s_lshl_b32 s{s_tmp}, s{s_w}, {wbits[0]}")
    c("the four neighbours in a 2 MiB run walk their slabs in different orders")
    for sb in (0, 1):
        msk = sum(1 << db for s_, db in xm if s_ == sb)
        e(f"    s_bitcmp1_b32 s2, {sb}")
        e(f"    s_cselect_b32 s{s_X if sb == 0 else 3}, 0x{msk:x}, 0")
    e(f"    s_xor_b32 s{s_X}, s{s_X}, s3")
    e(f"    s_lshl_b32 s3, s2, 19")
    e(f"    s_add_u32 s3, s3, s{s_tmp}")
    e(f"    s_sub_u32 s{s_K+2}, 0x80000, s{s_tmp}")
    e(f"    s_mov_b32 s{s_K+3}, 0x20000")
    e(f"    s_mov_b32 s{s_V+2}, s{s_K+2}")
    e(f"    s_mov_b32 s{s_V+3}, 0x20000")
    e(f"    s_mov_b32 s{s_Q+2}, 1024")
    e(f"    s_mov_b32 s{s_Q+3}, 0x20000")
    e(f"    s_lshl_b32 s{s_tmp}, s2, 10")
    e("    s_waitcnt lgkmcnt(0)")
    stamp(1)
    e(f"    s_add_u32 s{s_K}, s6, s3")
    e(f"    s_addc_u32 s{s_K+1}, s7, 0")
    e(f"    s_add_u32 s{s_Q}, s4, s{s_tmp}")
    e(f"    s_addc_u32 s{s_Q+1}, s5, 0")
    e(f"    buffer_load_dwordx4 v[{v_Q}:{v_Q+3}], v{v_offK}, s[{s_Q}:{s_Q+3}], 0 offen")
    for i in range(R0): load(i)
    c("the rest of the set-up runs under the first loads")
    e(f"    s_add_u32 s{s_V}, s8, s3")
    e(f"    s_addc_u32 s{s_V+1}, s9, 0")
    e(f"    s_add_u32 s{s_O}, s16, s{s_tmp}")
    e(f"    s_addc_u32 s{s_O+1}, s17, 0")
    e(f"    s_mov_b32 s{s_O+2}, 1024")
    e(f"    s_mov_b32 s{s_O+3}, 0x20000")
    e(f"    s_lshl_b32 s{s_tmp}, s2, 8")
    e(f"    s_add_u32 s{s_KT}, s10, s{s_tmp}")
    e(f"    s_addc_u32 s{s_KT+1}, s11, 0")
    e(f"    s_mov_b32 s{s_KT+2}, 256")
    e(f"    s_mov_b32 s{s_KT+3}, 0x20000")
    e(f"    s_add_u32 s{s_VT}, s12, s{s_tmp}")
    e(f"    s_addc_u32 s{s_VT+1}, s13, 0")
    e(f"    s_mov_b32 s{s_VT+2}, 256")
    e(f"    s_mov_b32 s{s_VT+3}, 0x20000")
    e(f"    s_lshr_b32 s{s_tmp}, s2, 4")
    e(f"    s_lshl_b32 s{s_tmp}, s{s_tmp}, 2")
    e(f"    s_load_dword s{s_mask}, s[14:15], s{s_tmp}")
    e(f"    s_mov_b32 s{s_c}, 0x{f2u(128**-0.5 * 1.4426950408889634):08x}                   ; D^-0.5 * log2(e)")
    for sm, val in ((s_M1, 0x22222222), (s_M2, 0x44444444), (s_M3, 0x88888888)):
        e(f"    s_mov_b32 s{sm}, 0x{val:x}")
        e(f"    s_mov_b32 s{sm+1}, 0x{val:x}")
    c("v4/v5: bf16 slot masks of the diagonal P operand (slot = lane&3)")
    e(f"    v_mov_b32 v{X[0]}, 0xffff")
    e(f"    v_mov_b32 v{X[1]}, 0xffff0000")
    e(f"    v_cndmask_b32 v{v_m0}, v{X[0]}, v{X[1]}, s[{s_M1}:{s_M1+1}]")
    e(f"    v_cndmask_b32 v{v_m0}, v{v_m0}, 0, s[{s_M2}:{s_M2+1}]")
    e(f"    v_cndmask_b32 v{v_m0}, v{v_m0}, 0, s[{s_M3}:{s_M3+1}]")
    e(f"    v_cndmask_b32 v{v_m1}, 0, v{X[0]}, s[{s_M2}:{s_M2+1}]")
    e(f"    v_cndmask_b32 v{v_m1}, v{v_m1}, v{X[1]}, s[{s_M3}:{s_M3+1}]")
    for k in range(8): e(f"    v_mov_b32 v{v_acc+k}, 0")
    e(f"    v_mov_b32 v{v_max}, 0xff7fffff")
    e(f"    v_mov_b32 v{v_sum}, 0")
    e(f"    s_mul_i32 s{s_tmp}, s{s_w}, {NIT*S_it}")
    e(f"    v_lshlrev_b32 v{v_sa}, 3, v{v_lane}")
    e(f"    v_add_u32 v{v_sa}, s{s_tmp}, v{v_sa}                    ; LDS address of this wave's scores")
    e(f"    v_mov_b32 v{v_z}, 0")
    e(f"    v_mov_b32 v{v_hist}, 0")
    e(f"    v_mov_b32 v{v_mb}, -1")
    e(f"    s_mov_b32 s{s_A}, 0")
    e(f"    s_mov_b32 s{s_cA}, 0")
    e(f"    s_mov_b32 s{s_base}, 0")
    e(f"    s_mov_b32 m0, 0")
    e(f"    s_bfe_u32 s{s_pw}, s{s_pw}, 0x10003")
    e(f"    s_add_u32 s{s_pw}, s{s_pw}, 1")
    e(f"    s_getreg_b32 s{s_dr}, hwreg(HW_REG_XCC_ID, 0, 1)")
    e(f"    s_cmp_eq_u32 s{s_dr}, 0")
    e(f"    s_cselect_b32 s{s_dr}, {drift}, 0")
    e("    s_barrier")
    for i in range(R0, PD):
        load(i, R0 - 1)

    def D(m, r): return v_D + 4 * m + r
    def extract(dst):
        e("    s_nop 7")
        for s in range(4):
            e(f"    v_cndmask_b32 v{X[s]}, v{D(s,0)}, v{D((s+1)&3,1)}, s[{s_M1}:{s_M1+1}]")
        for s in range(4):
            e(f"    v_cndmask_b32 v{X[s]}, v{X[s]}, v{D((s+2)&3,2)}, s[{s_M2}:{s_M2+1}]")
        for s in (2, 3, 0, 1):
            e(f"    v_cndmask_b32 v{X[s]}, v{X[s]}, v{D((s+3)&3,3)}, s[{s_M3}:{s_M3+1}]")
        e(f"    v_add_f32_dpp v{X[2]}, v{X[3]}, v{X[2]} quad_perm:[3,0,1,2] {DPPF}")
        e(f"    s_nop 0")
        e(f"    v_add_f32_dpp v{X[0]}, v{X[1]}, v{X[0]} quad_perm:[3,0,1,2] {DPPF}")
        e(f"    s_nop 1")
        e(f"    v_add_f32_dpp v{dst}, v{X[2]}, v{X[0]} quad_perm:[2,3,0,1] {DPPF}")
        e(f"    v_max_f32 v{v_max}, v{v_max}, v{dst}")

    def k_iter(it, R):
        cur["hi"] = None
        for p in range(U):
            i = it * U + p
            load(i + PD, R[p] - 1)
            sl = slot_of(i)
            e(f"    v_mfma_f32_16x16x32_bf16 v[{D(p%4,0)}:{D(p%4,3)}], v[{sl}:{sl+3}], v[{v_Q}:{v_Q+3}], 0")
            if p % 4 == 3: extract(v_Sn + p // 4)
        e(f"    ds_write_b64 v{v_sa}, v[{v_Sn}:{v_Sn+1}]")
        e(f"    v_add_u32 v{v_sa}, {S_it}, v{v_sa}")

    def dispatcher(tag, exit_label):
        e(f"L_{tag}_disp:")
        e(f"    s_sub_u32 s{s_cnt}, s{s_cnt}, 1")
        e(f"    s_cbranch_scc1 {exit_label}")
        c("own time at checkpoint m0 (sampled one pass ago) -> history; mailbox as read one pass ago")
        e(f"    s_waitcnt lgkmcnt(0)")
        e(f"    v_readfirstlane_b32 s{s_t2}, v{v_mb}")
        e(f"    v_readfirstlane_b32 s{s_t3}, v{v_mb+1}")
        e(f"    s_add_u32 s{s_tmp}, s{s_now}, s{s_cA}")
        e(f"    v_writelane_b32 v{v_hist}, s{s_tmp}, m0")
        e(f"    s_sub_i32 s{s_A}, s{s_A}, s{s_dr}")
        e(f"    s_cmp_lg_u32 s{s_w}, s{s_pw}")
        e(f"    s_cbranch_scc1 L_{tag}_nopub")
        e(f"    s_or_b32 s{s_tmp}, s{s_now}, 1")
        e(f"    v_mov_b32 v{X[0]}, s{s_tmp}")
        e(f"    s_lshl_b32 s{s_tmp}, m0, 2")
        e(f"    v_mov_b32 v{X[1]}, s{s_tmp}")
        e(f"    ds_write_b32 v{X[1]}, v{X[0]} offset:{lds_T}")
        e(f"L_{tag}_nopub:")
        e(f"    ds_read_b64 v[{v_mb}:{v_mb+1}], v{v_z} offset:{lds_R}")
        e(f"    s_memrealtime s[{s_now}:{s_now+1}]")
        e(f"    s_mov_b32 s{s_cA}, s{s_A}")
        e(f"    s_add_u32 m0, m0, 1")
        e(f"    s_cmp_lt_i32 s{s_t2}, 0")
        e(f"    s_cbranch_scc1 L_{tag}_pick")
        e(f"    v_readlane_b32 s{s_tmp}, v{v_hist}, s{s_t2}")
        e(f"    s_nop 0")
        e(f"    s_sub_i32 s{s_base}, s{s_tmp}, s{s_t3}")
        e(f"L_{tag}_pick:")
        c("lag behind the reference, less what deeper iterations since then should have gained")
        e(f"    s_sub_i32 s{s_tmp}, s{s_base}, s{s_A}")
        if tag == "v" and endn:
            e(f"    s_cmp_lt_u32 s{s_cnt}, {endn}")
            e(f"    s_cselect_b32 s{s_t2}, {endx}, 0")
            e(f"    s_add_i32 s{s_tmp}, s{s_tmp}, s{s_t2}")
        for m in range(len(ml) - 1, 1, -1):
            e(f"    s_cmp_gt_i32 s{s_tmp}, {ml[m][1]}")
            e(f"    s_cbranch_scc1 L_{tag}_m{m}")
        e(f"    s_cmp_lt_i32 s{s_tmp}, {ml[0][1]}")
        e(f"    s_cbranch_scc1 L_{tag}_m0")
    def bodies(tag, body):
        for m in [1, 0] + list(range(2, len(ml))):
            e(f"L_{tag}_m{m}:                                     ; {ml[m][0][0]} loads in flight")
            if ml[m][2]: e(f"    s_add_i32 s{s_A}, s{s_A}, {ml[m][2]}")
            if stamps: e(f"    s_add_u32 s86, s86, {1 << (8*m)}")
            body([int(ch) for ch in ml[m][0]], m)
            e(f"    s_branch L_{tag}_disp")

    if stamps:
        e(f"    s_mov_b32 s86, 0")
        e(f"    s_waitcnt vmcnt({PD - 1})")
        stamp(2)
    e(f"    s_mov_b32 s{s_cnt}, {NIT-1}")
    dispatcher("k", "L_k_last")
    def kb(R, m):
        k_iter(1, R)
        if stamps:
            e(f"    s_cmp_eq_u32 s{s_cnt}, {NIT - 1 - NIT//2}")
            e(f"    s_cbranch_scc0 L_ns1_{m}")
            stamp(4)
            e(f"L_ns1_{m}:")
    bodies("k", kb)
    e("L_k_last:                                       ; its prefetch runs into V")
    k_iter(NIT - 1, [Rn] * 8)
    stamp(6)
    e(f"    buffer_load_dwordx4 v[{v_KT}:{v_KT+3}], v{v_offK}, s[{s_KT}:{s_KT+3}], 0 offen")
    e(f"    v_and_b32 v{X[0]}, 0xf0, v{v_offV}")
    e(f"    buffer_load_dwordx4 v[{v_VT}:{v_VT+3}], v{X[0]}, s[{s_VT}:{s_VT+3}], 0 offen")
    e(f"    v_subrev_u32 v{v_sa}, {NIT*S_it}, v{v_sa}")
    e(f"    ds_read_b64 v[{v_Sn}:{v_Sn+1}], v{v_sa}")
    def allreduce(reg, op):
        e(f"    {op}_dpp v{reg}, v{reg}, v{reg} quad_perm:[1,0,3,2] {DPPF}")
        e("    s_nop 1")
        e(f"    {op}_dpp v{reg}, v{reg}, v{reg} quad_perm:[2,3,0,1] {DPPF}")
        e("    s_nop 0")
        e(f"    v_mov_b32 v{X[0]}, v{reg}")
        e("    s_nop 1")
        e(f"    v_permlane16_swap_b32 v{X[0]}, v{reg}")
        e("    s_nop 1")
        e(f"    {op} v{reg}, v{reg}, v{X[0]}")
        e("    s_nop 0")
        e(f"    v_mov_b32 v{X[0]}, v{reg}")
        e("    s_nop 1")
        e(f"    v_permlane32_swap_b32 v{X[0]}, v{reg}")
        e("    s_nop 1")
        e(f"    {op} v{reg}, v{reg}, v{X[0]}")
    c("true max of this wave's keys, per head")
    allreduce(v_max, "v_max_f32")
    e(f"    v_mul_f32 v{v_max}, s{s_c}, v{v_max}")
    def mkP(regs, dsts):
        for r in regs: e(f"    v_fma_f32 v{r}, v{r}, s{s_c}, -v{v_max}")
        for r in regs: e(f"    v_exp_f32 v{r}, v{r}")
        e("    s_nop 0")
        for r in regs: e(f"    v_add_f32 v{v_sum}, v{v_sum}, v{r}")
        for r, d in zip(regs, dsts):
            if d is not None: e(f"    v_cvt_pk_bf16_f32 v{d}, v{r}, v{r}")
    e("    s_waitcnt lgkmcnt(0)")
    mkP([v_Sn, v_Sn + 1], [v_P, v_P + 1])
    def andP(A, P, qq):
        e(f"    v_and_b32_dpp v{A}, v{P}, v{v_m0} quad_perm:[{qq},{qq},{qq},{qq}] {DPPF}")
        e(f"    v_and_b32_dpp v{A+1}, v{P}, v{v_m1} quad_perm:[{qq},{qq},{qq},{qq}] {DPPF}")
    def mf(A, sl):
        e(f"    v_mfma_f32_16x16x16_bf16 v[{v_acc}:{v_acc+3}], v[{A}:{A+1}], v[{sl}:{sl+1}], v[{v_acc}:{v_acc+3}]")
        e(f"    v_mfma_f32_16x16x16_bf16 v[{v_acc+4}:{v_acc+7}], v[{A}:{A+1}], v[{sl+2}:{sl+3}], v[{v_acc+4}:{v_acc+7}]")
    def v_iter(it, R, first=False):
        cur["hi"] = None
        e(f"    v_add_u32 v{v_sa}, {S_it}, v{v_sa}")
        e(f"    ds_read_b64 v[{v_Sn}:{v_Sn+1}], v{v_sa}")
        for p in range(U):
            j = it * U + p; i = NL + j
            A = v_A + 2 * (p & 1)
            andP(A, v_P + p // 4, p % 4)
            n = R[p] - 1 + (2 if (first and p < R[p]) else 0)
            load(i + PD, n)
            mf(A, slot_of(i))
            if p == 5:
                e("    s_waitcnt lgkmcnt(0)")
                mkP([v_Sn, v_Sn + 1], [v_P, None])
            if p == 7:
                e(f"    v_cvt_pk_bf16_f32 v{v_P+1}, v{v_Sn+1}, v{v_Sn+1}")
    assert Rn + 1 <= 7
    e("; ---- V phase")
    v_iter(0, [Rn] * 8, first=True)
    c("tree token: logit in log2 units incl. (1 - mask) * -1e9, as a fifth (max, sum = 1) pair")
    e(f"    v_mfma_f32_16x16x32_bf16 v[{D(0,0)}:{D(0,3)}], v[{v_KT}:{v_KT+3}], v[{v_Q}:{v_Q+3}], 0")
    e(f"    s_bitcmp1_b32 s2, 3")
    e(f"    s_cselect_b32 s{s_tmp}, 0, 16")
    e(f"    s_lshl_b32 s{s_mask}, s{s_mask}, s{s_tmp}")
    e(f"    s_and_b32 s{s_mask}, s{s_mask}, 0xffff0000")
    e(f"    s_mov_b32 s{s_cnt}, {NIT-2}")
    e("    s_nop 4")
    e(f"    v_cndmask_b32 v{X[0]}, v{D(0,0)}, v{D(0,1)}, s[{s_M1}:{s_M1+1}]")
    e(f"    v_cndmask_b32 v{X[0]}, v{X[0]}, v{D(0,2)}, s[{s_M2}:{s_M2+1}]")
    e(f"    v_cndmask_b32 v{X[0]}, v{X[0]}, v{D(0,3)}, s[{s_M3}:{s_M3+1}]")
    e(f"    v_mov_b32 v{X[1]}, s{s_mask}")
    e(f"    v_sub_f32 v{X[1]}, 1.0, v{X[1]}")
    e(f"    v_add_f32_dpp v{X[0]}, v{X[0]}, v{X[0]} quad_perm:[1,0,3,2] {DPPF}")
    e(f"    v_mul_f32 v{X[1]}, 0x{f2u(-1e9*1.4426950408889634):08x}, v{X[1]}")
    e(f"    s_nop 0")
    e(f"    v_add_f32_dpp v{X[0]}, v{X[0]}, v{X[0]} quad_perm:[2,3,0,1] {DPPF}")
    e(f"    s_nop 0")
    e(f"    v_fma_f32 v{v_KT}, v{X[0]}, s{s_c}, v{X[1]}")
    e(f"    v_mov_b32 v{v_KT+1}, 1.0")
    dispatcher("v", "L_v_last")
    def vb(R, m):
        v_iter(1, R)
        if stamps:
            e(f"    s_cmp_eq_u32 s{s_cnt}, {NIT - 2 - (NIT//2 - 1)}")
            e(f"    s_cbranch_scc0 L_ns2_{m}")
            stamp(8)
            e(f"L_ns2_{m}:")
    bodies("v", vb)
    e("L_v_last:                                       ; last 8 positions: one load left, merge factors meanwhile")
    stamp(9)
    cur["hi"] = None
    load(total - 1)
    e("    s_nop 1")
    allreduce(v_sum, "v_add_f32")
    e(f"    v_and_b32 v{X[0]}, 12, v{v_lane}")
    e(f"    v_lshlrev_b32 v{X[0]}, 1, v{X[0]}")
    e(f"    s_lshl_b32 s{s_tmp}, s{s_w}, 5")
    e(f"    v_add_u32 v{X[1]}, s{s_tmp}, v{X[0]}")
    e(f"    s_mov_b64 exec, 0x1111")
    e(f"    ds_write_b64 v{X[1]}, v[{v_max}:{v_max+1}] offset:{lds_ml}")
    e(f"    s_cmp_lg_u32 s{s_w}, 0")
    e(f"    s_cbranch_scc1 L_notree")
    e(f"    ds_write_b64 v{X[0]}, v[{v_KT}:{v_KT+1}] offset:{lds_ml + W*32}")
    e("L_notree:")
    e(f"    s_mov_b64 exec, -1")
    e(f"    v_lshrrev_b32 v{X[0]}, 4, v{v_lane}")
    e(f"    v_lshlrev_b32 v{X[0]}, 3, v{X[0]}")
    e(f"    v_add_u32 v{X[1]}, s{s_tmp}, v{X[0]}")
    e("    s_waitcnt lgkmcnt(0)")
    e("    s_barrier")
    for w in range(W + 1):
        e(f"    ds_read_b64 v[{v_ml+2*w}:{v_ml+2*w+1}], v{X[0]} offset:{lds_ml + w*32}")
    e(f"    ds_read_b32 v{v_g}, v{X[1]} offset:{lds_ml}")
    for k in range(4):
        e(f"    v_lshlrev_b32 v{v_tv+2*k}, 16, v{v_VT+k}")
        e(f"    v_and_b32 v{v_tv+2*k+1}, 0xffff0000, v{v_VT+k}")
    e("    s_waitcnt lgkmcnt(0)")
    c("overall max M, denominator L; own factor 2^(m_w - M) / L; wave 0 also carries the tree token")
    e(f"    v_max_f32 v{X[2]}, v{v_ml}, v{v_ml+2}")
    for w in range(2, W + 1): e(f"    v_max_f32 v{X[2]}, v{X[2]}, v{v_ml+2*w}")
    for w in range(W + 1): e(f"    v_sub_f32 v{v_ml+2*w}, v{v_ml+2*w}, v{X[2]}")
    e(f"    v_sub_f32 v{v_g}, v{v_g}, v{X[2]}")
    for w in range(W + 1): e(f"    v_exp_f32 v{v_ml+2*w}, v{v_ml+2*w}")
    e(f"    v_exp_f32 v{v_g}, v{v_g}")
    e(f"    v_mul_f32 v{X[3]}, v{v_ml}, v{v_ml+1}")
    for w in range(1, W + 1): e(f"    v_fmac_f32 v{X[3]}, v{v_ml+2*w}, v{v_ml+2*w+1}")
    e(f"    v_rcp_f32 v{X[3]}, v{X[3]}")
    e(f"    s_cmp_eq_u32 s{s_w}, 0")
    e(f"    s_cselect_b32 s{s_tmp}, 1.0, 0")
    e(f"    v_mul_f32 v{v_g}, v{v_g}, v{X[3]}")
    e(f"    v_mul_f32 v{X[3]}, v{v_ml+2*W}, v{X[3]}")
    e(f"    v_mul_f32 v{X[3]}, s{s_tmp}, v{X[3]}")
    for k in range(8): e(f"    v_mul_f32 v{v_tv+k}, v{X[3]}, v{v_tv+k}")
    e(f"    s_lshl_b32 s{s_tmp}, s{s_w}, 11")
    e(f"    v_lshlrev_b32 v{X[2]}, 5, v{v_lane}")
    e(f"    v_add_u32 v{X[2]}, s{s_tmp}, v{X[2]}")
    e(f"    s_lshl_b32 s{s_tmp}, s{s_w}, 9")
    e(f"    v_lshlrev_b32 v{X[3]}, 3, v{v_lane}")
    e(f"    v_add_u32 v{X[3]}, s{s_tmp}, v{X[3]}")
    e(f"    v_lshrrev_b32 v{v_sa}, 1, v{X[3]}")
    for p in range(8):
        i = total - 8 + p
        A = v_A + 2 * (p & 1)
        andP(A, v_P + p // 4, p % 4)
        e(f"    s_waitcnt vmcnt({7 - p})")
        e("    s_nop 0")
        mf(A, slot_of(i))
    stamp(10)
    e("    s_nop 6")
    c("scaled partial outputs (lane = head, 8 dims) -> LDS; wave h adds up head h and stores it")
    for k in range(8):
        e(f"    v_fma_f32 v{v_acc+k}, v{v_acc+k}, v{v_g}, v{v_tv+k}")
        if k == 3: e(f"    ds_write_b128 v{X[2]}, v[{v_acc}:{v_acc+3}] offset:{lds_O}")
    e(f"    ds_write_b128 v{X[2]}, v[{v_acc+4}:{v_acc+7}] offset:{lds_O+16}")
    e("    s_waitcnt lgkmcnt(0)")
    e("    s_barrier")
    for w in range(W):
        e(f"    ds_read_b64 v[{v_D+2*w}:{v_D+2*w+1}], v{X[3]} offset:{lds_O + w*2048}")
    e("    s_waitcnt lgkmcnt(2)")
    e(f"    v_add_f32 v{v_D}, v{v_D}, v{v_D+2}")
    e(f"    v_add_f32 v{v_D+1}, v{v_D+1}, v{v_D+3}")
    e("    s_waitcnt lgkmcnt(0)")
    e(f"    v_add_f32 v{v_D+4}, v{v_D+4}, v{v_D+6}")
    e(f"    v_add_f32 v{v_D+5}, v{v_D+5}, v{v_D+7}")
    e(f"    v_add_f32 v{v_D}, v{v_D}, v{v_D+4}")
    e(f"    v_add_f32 v{v_D+1}, v{v_D+1}, v{v_D+5}")
    e(f"    v_cvt_pk_bf16_f32 v{v_D}, v{v_D}, v{v_D+1}")
    e(f"    buffer_store_dword v{v_D}, v{v_sa}, s[{s_O}:{s_O+3}], 0 offen")
    if stamps:
        e("    s_memrealtime s[82:83]")
        e("    s_waitcnt lgkmcnt(0)")
        for k in (3, 5, 7):
            e(f"    s_mov_b32 s{60+2*k}, 0")
            e(f"    s_mov_b32 s{61+2*k}, 0")
        e(f"    s_mul_i32 s{s_tmp}, s88, {W}")
        e(f"    s_add_u32 s{s_tmp}, s{s_tmp}, s{s_w}")
        e(f"    s_lshl_b32 s{s_tmp}, s{s_tmp}, 7")
        e(f"    s_add_u32 s92, s90, s{s_tmp}")
        e(f"    s_addc_u32 s93, s91, 0")
        e(f"    s_mov_b32 s94, 128")
        e(f"    s_mov_b32 s95, 0x20000")
        e(f"    s_getreg_b32 s84, hwreg(HW_REG_XCC_ID)")
        e(f"    s_getreg_b32 s85, hwreg(HW_REG_HW_ID)")
        e(f"    s_mov_b32 s87, s{s_base}")
        for k in range(28): e(f"    v_mov_b32 v{v_ring+k}, s{60+k}")
        e(f"    v_mov_b32 v{v_lane}, 0")
        e(f"    s_mov_b64 exec, 1")
        for k in range(7):
            e(f"    buffer_store_dwordx4 v[{v_ring+4*k}:{v_ring+4*k+3}], v{v_lane}, s[92:95], 0 offen offset:{16*k}")
    e("L_end:")
    e("    s_endpgm")
    h_ws = 4; h_X = 8; h_c = 12; h_t = 13; h_row = 14; h_bud = 15; h_a = 16; h_b = 17; h_n = 18; h_gc = 19
    h_I = 21; h_S = 23; h_G = 24; h_off = 28; h_gr = 29; h_gn = 30; h_gm = 31
    e("; ---- helper wave: reference time of every second checkpoint = mean over the (up to 16) publishing")
    e("; workgroups on this die, shifted by the die's offset from the other dies (only speed depends on it)")
    e("L_helper:")
    e(f"    s_waitcnt lgkmcnt(0)")
    e(f"    s_load_dwordx2 s[{h_ws}:{h_ws+1}], s[0:1], 64")
    e(f"    v_lshlrev_b32 v2, 2, v{v_lane}")
    e(f"    v_mov_b32 v3, 0")
    e(f"    v_mov_b32 v4, -1")
    e(f"    ds_write_b32 v2, v3 offset:{lds_T}")
    e(f"    ds_write_b32 v3, v4 offset:{lds_R}")
    e(f"    s_getreg_b32 s{h_a}, hwreg(HW_REG_XCC_ID, 0, 3)")
    e(f"    s_lshl_b32 s{h_a}, s{h_a}, 13")
    e(f"    s_add_u32 s{h_a}, s{h_a}, 0x400000")
    e(f"    s_waitcnt lgkmcnt(0)")
    e("    s_barrier")
    e(f"    s_add_u32 s{h_X}, s{h_ws}, s{h_a}                       ; rows of this die: 128 B per checkpoint")
    e(f"    s_addc_u32 s{h_X+1}, s{h_ws+1}, 0")
    e(f"    s_mov_b32 s{h_X+2}, 8192")
    e(f"    s_mov_b32 s{h_X+3}, 0x20000")
    e(f"    s_add_u32 s{h_G}, s{h_ws}, 0x420000")
    e(f"    s_addc_u32 s{h_G+1}, s{h_ws+1}, 0")
    e(f"    s_mov_b32 s{h_G+2}, 0x8000")
    e(f"    s_mov_b32 s{h_G+3}, 0x20000")
    e(f"    v_and_b32 v14, 7, v{v_lane}")
    e(f"    v_lshlrev_b32 v14, 7, v14")
    e(f"    s_and_b32 s{h_a}, s2, 7")
    e(f"    s_lshl_b32 s{h_a}, s{h_a}, 7")
    e(f"    v_mov_b32 v15, s{h_a}")
    for r in (h_off, h_I, h_S, h_gr, h_gn, h_gm, h_gc, h_c, h_row): e(f"    s_mov_b32 s{r}, 0")
    e(f"    v_and_b32 v5, 60, v2")
    e(f"    s_lshr_b32 s{h_a}, s2, 3")
    e(f"    s_lshl_b32 s{h_a}, s{h_a}, 2")
    e(f"    v_mov_b32 v6, s{h_a}")
    e(f"    s_mov_b32 s{h_bud}, 20000")
    e("L_h_next:")
    e(f"    s_lshl_b32 s{h_a}, s{h_c}, 2")
    e(f"    v_mov_b32 v7, s{h_a}")
    e("L_h_w1:                                         ; own checkpoint reached?")
    e(f"    ds_read_b32 v8, v7 offset:{lds_T}")
    e(f"    s_sub_u32 s{h_bud}, s{h_bud}, 1")
    e(f"    s_cbranch_scc1 L_end")
    e(f"    s_waitcnt lgkmcnt(0)")
    e(f"    v_readfirstlane_b32 s{h_t}, v8")
    e(f"    s_nop 0")
    e(f"    s_cmp_lg_u32 s{h_t}, 0")
    e(f"    s_cbranch_scc1 L_h_pub")
    e(f"    s_sleep {slp}")
    e(f"    s_branch L_h_w1")
    e("L_h_pub:")
    e(f"    s_cmp_ge_u32 s2, 128")
    e(f"    s_cbranch_scc1 L_h_w2")
    e(f"    s_cmp_ge_u32 s2, 8")
    e(f"    s_cbranch_scc1 L_h_st")
    c("workgroups 0-7: look at the other dies' means of the last exchanged checkpoint")
    e(f"    s_cmp_eq_u32 s{h_gr}, 0")
    e(f"    s_cbranch_scc1 L_h_adj")
    e(f"    buffer_load_dword v9, v14, s[{h_G}:{h_G+3}], s{h_gr} offen sc1")
    e(f"    s_waitcnt vmcnt(0)")
    e(f"    v_subrev_u32 v9, s{h_gm}, v9")
    e(f"    v_add_u32 v11, 1000, v9")
    e(f"    v_cmp_gt_u32 vcc, 2000, v11                 ; written in this launch?")
    e(f"    s_nop 1")
    e(f"    v_cndmask_b32 v9, {gfill}, v9, vcc               ; not there yet: that die is behind")
    e(f"    s_nop 1")
    e(f"    v_add_u32_dpp v9, v9, v9 quad_perm:[1,0,3,2] {DPPF}")
    e(f"    s_nop 1")
    e(f"    v_add_u32_dpp v9, v9, v9 quad_perm:[2,3,0,1] {DPPF}")
    e(f"    s_nop 1")
    e(f"    v_add_u32_dpp v9, v9, v9 row_half_mirror {DPPF}")
    e(f"    s_cmp_eq_u64 vcc, exec")
    e(f"    s_cselect_b32 s{h_gr}, 0, s{h_gr}")
    e(f"    v_readfirstlane_b32 s{h_a}, v9")
    e(f"    s_nop 0")
    e(f"    s_mul_i32 s{h_a}, s{h_a}, -2")
    e(f"    s_sub_i32 s{h_I}, s{h_a}, s{h_S}")
    e("L_h_adj:")
    e(f"    s_mul_i32 s{h_a}, s{h_I}, {kappa}")
    e(f"    s_ashr_i32 s{h_a}, s{h_a}, 3")
    e(f"    s_min_i32 s{h_a}, s{h_a}, {omax}")
    e(f"    s_max_i32 s{h_off}, s{h_a}, {-omin}")
    e(f"    s_sub_i32 s{h_a}, s{h_off}, {16*dz[1]}")
    e(f"    s_max_i32 s{h_a}, s{h_a}, 0")
    e(f"    s_add_i32 s{h_b}, s{h_off}, {16*dz[0]}")
    e(f"    s_min_i32 s{h_b}, s{h_b}, 0")
    e(f"    s_add_i32 s{h_a}, s{h_a}, s{h_b}")
    e(f"    s_mul_i32 s{h_a}, s{h_a}, {gg}")
    e(f"    s_ashr_i32 s{h_a}, s{h_a}, 5                      ; gain expected from this row's shift")
    e(f"    s_sub_i32 s{h_I}, s{h_I}, s{h_a}")
    e(f"    s_add_i32 s{h_S}, s{h_S}, s{h_a}")
    e(f"    v_subrev_u32 v8, s{h_off}, v8                   ; the shift rides on this entry of the row")
    e("L_h_st:")
    e(f"    s_mov_b64 exec, 1")
    e(f"    buffer_store_dword v8, v6, s[{h_X}:{h_X+3}], s{h_row} offen")
    e(f"    s_mov_b64 exec, -1")
    e("L_h_w2:                                         ; row complete, or own waves two checkpoints further")
    e(f"    buffer_load_dword v9, v5, s[{h_X}:{h_X+3}], s{h_row} offen sc1")
    e(f"    ds_read_b32 v10, v7 offset:{lds_T + 4*giveup}")
    e(f"    s_sub_u32 s{h_bud}, s{h_bud}, 1")
    e(f"    s_cbranch_scc1 L_end")
    e(f"    s_waitcnt vmcnt(0) lgkmcnt(0)")
    e(f"    v_subrev_u32 v9, s{h_t}, v9")
    e(f"    v_readfirstlane_b32 s{h_n}, v10")
    e(f"    v_add_u32 v11, 2000, v9")
    e(f"    v_cmp_gt_u32 vcc, 4000, v11                 ; written in this launch?")
    e(f"    s_nop 1")
    e(f"    s_cmp_eq_u64 vcc, exec")
    e(f"    s_cbranch_scc1 L_h_sum")
    e(f"    s_cmp_lg_u32 s{h_n}, 0")
    e(f"    s_cbranch_scc1 L_h_fill")
    e(f"    s_sleep {slp}")
    e(f"    s_branch L_h_w2")
    e("L_h_fill:")
    e(f"    v_cndmask_b32 v9, 0, v9, vcc")
    e("L_h_sum:")
    e(f"    s_nop 1")
    e(f"    v_add_u32_dpp v9, v9, v9 quad_perm:[1,0,3,2] {DPPF}")
    e(f"    s_nop 1")
    e(f"    v_add_u32_dpp v9, v9, v9 quad_perm:[2,3,0,1] {DPPF}")
    e(f"    s_nop 1")
    e(f"    v_add_u32_dpp v9, v9, v9 row_half_mirror {DPPF}")
    e(f"    s_nop 1")
    e(f"    v_add_u32_dpp v9, v9, v9 row_mirror {DPPF}")
    e(f"    v_mov_b32 v12, s{h_c}")
    e(f"    v_ashrrev_i32 v9, 4, v9")
    e(f"    v_add_u32 v13, s{h_t}, v9")
    e(f"    ds_write_b64 v3, v[12:13] offset:{lds_R}")
    e(f"    s_cmp_ge_u32 s2, 8")
    e(f"    s_cbranch_scc1 L_h_adv")
    e(f"    s_cmp_lg_u32 s{h_gc}, s{h_c}")
    e(f"    s_cbranch_scc1 L_h_adv")
    c("workgroups 0-7: hand the unshifted mean to the other dies now and then")
    e(f"    s_add_u32 s{h_gc}, s{h_gc}, {gp}")
    e(f"    s_mov_b32 s{h_S}, 0")
    e(f"    s_ashr_i32 s{h_a}, s{h_off}, 4")
    e(f"    v_add_u32 v16, s{h_a}, v13")
    e(f"    s_add_u32 s{h_gn}, s{h_gn}, 1024")
    e(f"    s_mov_b32 s{h_gr}, s{h_gn}")
    e(f"    v_readfirstlane_b32 s{h_gm}, v16")
    e(f"    s_mov_b64 exec, 1")
    e(f"    buffer_store_dword v16, v15, s[{h_G}:{h_G+3}], s{h_gr} offen sc0 sc1")
    e(f"    s_mov_b64 exec, -1")
    e("L_h_adv:")
    e(f"    s_add_u32 s{h_c}, s{h_c}, {cp}")
    e(f"    s_add_u32 s{h_row}, s{h_row}, 128")
    e(f"    s_cmp_le_u32 s{h_c}, {lastc}")
    e(f"    s_cbranch_scc1 L_h_next")
    e("    s_endpgm")
    e('.section .rodata,"a"')
    e(".p2align 6")
    e(f".amdhsa_kernel {kname}")
    e(f"  .amdhsa_next_free_vgpr {nv}")
    e(f"  .amdhsa_next_free_sgpr {ns}")
    e(f"  .amdhsa_accum_offset {(nv+3)//4*4}")
    e("  .amdhsa_group_segment_fixed_size 0")
    e("  .amdhsa_kernarg_size 72")
    e("  .amdhsa_user_sgpr_count 2")
    e("  .amdhsa_user_sgpr_kernarg_segment_ptr 1")
    e("  .amdhsa_system_sgpr_workgroup_id_x 1")
    e(".end_amdhsa_kernel")
    return "\n".join(out) + "\n"

if __name__ == "__main__":
    ap = argparse.ArgumentParser()
    ap.add_argument("--stamps", action="store_true")
    ap.add_argument("-o", default="/dev/stdout")
    a, _ = ap.parse_known_args()
    open(a.o, "w").write(gen(a.stamps))
```

```python
import sys, argparse, struct

NAME = "standalone__tree_speculative_verify_tree_attention_over_candidate_token_tree__sampling"
HEADER = open("cdna_kernels/%s.s.ref" % NAME).read().split("; Override launch")[0]
def f2u(x): return struct.unpack("<I", struct.pack("<f", x))[0]
DPPF = "row_mask:0xf bank_mask:0xf"

DOC = """\
; ---------------------------------------------------------------------------------------------
; The kernel is HBM bound (256 MiB of K/V read once), so everything is built around the stream.
;
;          the matching-quarter entries are picked and summed across the quad with DPP, giving
;     DRAM pages busy; workgroups with equal id%8 own whole 2 MiB runs.
;     is behind the common pace keeps 6-7 loads in flight for an iteration, one that is far ahead 4.
;     This only changes s_waitcnt depths, never the arithmetic; entries of d_ws that were not
;     written by this launch are recognised by their time and ignored; every helper loop is bounded.
; ---------------------------------------------------------------------------------------------"""

def gen(stamps=False, Rn=5, R0=6, cp=2, slp=8, giveup=2, kappa=10, gp=6, gfill=35, gg=5, dz=(15, 5), omax=480, omin=480,
        ml=(("44444444", -35, -28), ("55555555", 0, 0), ("66666666", 10, 19), ("77777777", 40, 32)), endn=2, endx=15,
        perm="j1,j2,w0,w1,j5,j0,j3,j4,j6", xm=((0, 10), (1, 17), (0, 18)), drift=3, lds_min=90000):
    kname = NAME + "_kernel"
    W = 4; C = 8; U = 8; PD = 7
    NL = 128; NIT = 16
    total = 2 * NL
    NPASS = (NIT - 1) + (NIT - 2)
    out = []; e = out.append
    c = lambda t: e("    ; " + t)
    v_z = 0; v_lane = 1; v_offK = 2; v_offV = 3; v_m0 = 4; v_m1 = 5
    v_max = 6; v_sum = 7; X = [8, 9, 10, 11]
    v_Q = 12; v_KT = 16; v_VT = 20; v_A = 24; v_acc = 28; v_D = 36
    v_sa = 52; v_hist = 53; v_Sn = 54; v_P = 56; v_mb = 58
    v_tv = 60; v_g = 68; v_ml = 70; v_ring = 80
    nv = v_ring + 4 * C
    s_B = 18; s_itc = 19; s_w = 20; s_off = 21; s_c = 22; s_mask = 23
    s_M1 = 24; s_M2 = 26; s_M3 = 28; s_cnt = 30; s_pw = 31
    s_K = 32; s_V = 36; s_Q = 40; s_KT = 44; s_VT = 48; s_O = 52
    s_X = 56; s_tmp = 57; s_t2 = 58; s_t3 = 59
    if stamps: s_now = 96; s_A = 98; s_base = 99; s_cA = 100; s_dr = 101; ns = 102
    else: s_now = 60; s_A = 62; s_base = 63; s_cA = 64; s_dr = 65; ns = 66
    S_it = 512
    lds_ml = W * NIT * S_it
    lds_O = lds_ml + 256
    lds_T = lds_O + W * 2048
    lds_R = lds_T + 256
    lds_size = max(lds_R + 64, lds_min)
    lastc = NPASS - 2 - giveup
    lastc -= lastc % cp

    pm = perm.split(",")
    def off(j): return sum(((j >> int(src[1])) & 1) << (10 + k) for k, src in enumerate(pm) if src[0] == "j")
    wbits = [10 + pm.index("w0"), 10 + pm.index("w1")]
    lom = 4095 & ~sum(1 << db for db in set(db for _, db in xm))
    def slot_of(i): return v_ring + 4 * (i % C)
    cur = {"hi": None}
    def load(i, wait=None):
        isV = i >= NL
        j = i - NL if isV else i
        if j == 0:
            e(f"    s_mov_b32 s{s_itc}, 0")
            e(f"    s_mov_b32 s{s_B}, s{s_X}")
            cur["hi"] = None
        elif j % 8 == 0:
            e(f"    s_add_u32 s{s_itc}, s{s_itc}, 1")
            runs = []
            for b_ in range(4):
                ab = 10 + pm.index(f"j{b_+3}")
                if runs and runs[-1][1] + runs[-1][2] == ab: runs[-1][2] += 1
                else: runs.append([b_, ab, 1])
            first = True
            for b_, ab, n in runs:
                dst = s_B if first else s_off
                e(f"    s_bfe_u32 s{dst}, s{s_itc}, 0x{(n << 16) | b_:x}")
                e(f"    s_lshl_b32 s{dst}, s{dst}, {ab}")
                if not first: e(f"    s_or_b32 s{s_B}, s{s_B}, s{s_off}")
                first = False
            e(f"    s_xor_b32 s{s_B}, s{s_B}, s{s_X}")
            cur["hi"] = None
        o = off(j % 8); hi, lo = o & ~lom, o & lom
        so = s_B
        if hi:
            if cur["hi"] != hi: e(f"    s_xor_b32 s{s_off}, s{s_B}, 0x{hi:x}")
            cur["hi"] = hi
            so = s_off
        sl = slot_of(i); srd = s_V if isV else s_K; vo = v_offV if isV else v_offK
        if wait is not None: e(f"    s_waitcnt vmcnt({wait})")
        e(f"    buffer_load_dwordx4 v[{sl}:{sl+3}], v{vo}, s[{srd}:{srd+3}], s{so} offen offset:{lo} nt")
    def stamp(k):
        if stamps: e(f"    s_memrealtime s[{60+2*k}:{61+2*k}]")

    e(HEADER.rstrip())
    e("; Override launch geometry by editing the next line (default: block=256,")
    e(f"; @launch grid=(256,1,1) block=({W*64+64},1,1) lds={lds_size}")
    e(DOC)
    e('.amdgcn_target "amdgcn-amd-amdhsa--gfx950"')
    e(".text")
    e(f".globl {kname}")
    e(".p2align 8")
    e(f".type {kname},@function")
    e(f"{kname}:")
    e("    s_load_dwordx16 s[4:19], s[0:1], 0")
    e(f"    s_memrealtime s[{s_now}:{s_now+1}]                  ; checkpoint 0")
    stamp(0)
    if stamps: e("    s_load_dwordx2 s[90:91], s[0:1], 64")
    e(f"    v_lshrrev_b32 v{X[0]}, 6, v0")
    e(f"    v_and_b32 v{v_lane}, 63, v0")
    e(f"    v_readfirstlane_b32 s{s_w}, v{X[0]}")
    e("    s_cmp_ge_u32 s2, 256")
    e("    s_cbranch_scc1 L_end")
    e(f"    v_lshlrev_b32 v{v_offV}, 4, v{v_lane}")
    e(f"    v_and_b32 v{X[0]}, 12, v{v_lane}")
    e(f"    v_lshlrev_b32 v{X[0]}, 6, v{X[0]}")
    e(f"    s_cmp_eq_u32 s{s_w}, {W}")
    e("    s_cbranch_scc1 L_helper")
    e(f"    s_mov_b32 s{s_pw}, s2")
    c("pair index: id bits [7:5][2:0][4:3]")
    e("    s_and_b32 s3, s2, 7")
    e("    s_lshl_b32 s3, s3, 2")
    e("    s_bfe_u32 s21, s2, 0x20003")
    e("    s_or_b32 s3, s3, s21")
    e("    s_and_b32 s2, s2, 0xe0")
    e("    s_or_b32 s2, s2, s3")
    if stamps: e(f"    s_mov_b32 s88, s{s_pw}")
    c("K / Q lane offset: key*256 + (lane>>4)*64 + (lane&3)*16, key = (lane>>2)&3")
    e(f"    v_and_b32 v{X[1]}, 48, v{v_lane}")
    e(f"    v_lshlrev_b32 v{X[1]}, 2, v{X[1]}")
    e(f"    v_and_b32 v{X[2]}, 48, v{v_offV}")
    e(f"    v_or3_b32 v{v_offK}, v{X[0]}, v{X[1]}, v{X[2]}")
    assert wbits[1] == wbits[0] + 1
    e(f"    s_lshl_b32 s{s_tmp}, s{s_w}, {wbits[0]}")
    c("the four neighbours in a 2 MiB run walk their slabs in different orders")
    for sb in (0, 1):
        msk = sum(1 << db for s_, db in xm if s_ == sb)
        e(f"    s_bitcmp1_b32 s2, {sb}")
        e(f"    s_cselect_b32 s{s_X if sb == 0 else 3}, 0x{msk:x}, 0")
    e(f"    s_xor_b32 s{s_X}, s{s_X}, s3")
    e(f"    s_lshl_b32 s3, s2, 19")
    e(f"    s_add_u32 s3, s3, s{s_tmp}")
    e(f"    s_sub_u32 s{s_K+2}, 0x80000, s{s_tmp}")
    e(f"    s_mov_b32 s{s_K+3}, 0x20000")
    e(f"    s_mov_b32 s{s_V+2}, s{s_K+2}")
    e(f"    s_mov_b32 s{s_V+3}, 0x20000")
    e(f"    s_mov_b32 s{s_Q+2}, 1024")
    e(f"    s_mov_b32 s{s_Q+3}, 0x20000")
    e(f"    s_lshl_b32 s{s_tmp}, s2, 10")
    e("    s_waitcnt lgkmcnt(0)")
    stamp(1)
    e(f"    s_add_u32 s{s_K}, s6, s3")
    e(f"    s_addc_u32 s{s_K+1}, s7, 0")
    e(f"    s_add_u32 s{s_Q}, s4, s{s_tmp}")
    e(f"    s_addc_u32 s{s_Q+1}, s5, 0")
    e(f"    buffer_load_dwordx4 v[{v_Q}:{v_Q+3}], v{v_offK}, s[{s_Q}:{s_Q+3}], 0 offen")
    for i in range(R0): load(i)
    c("the rest of the set-up runs under the first loads")
    e(f"    s_add_u32 s{s_V}, s8, s3")
    e(f"    s_addc_u32 s{s_V+1}, s9, 0")
    e(f"    s_add_u32 s{s_O}, s16, s{s_tmp}")
    e(f"    s_addc_u32 s{s_O+1}, s17, 0")
    e(f"    s_mov_b32 s{s_O+2}, 1024")
    e(f"    s_mov_b32 s{s_O+3}, 0x20000")
    e(f"    s_lshl_b32 s{s_tmp}, s2, 8")
    e(f"    s_add_u32 s{s_KT}, s10, s{s_tmp}")
    e(f"    s_addc_u32 s{s_KT+1}, s11, 0")
    e(f"    s_mov_b32 s{s_KT+2}, 256")
    e(f"    s_mov_b32 s{s_KT+3}, 0x20000")
    e(f"    s_add_u32 s{s_VT}, s12, s{s_tmp}")
    e(f"    s_addc_u32 s{s_VT+1}, s13, 0")
    e(f"    s_mov_b32 s{s_VT+2}, 256")
    e(f"    s_mov_b32 s{s_VT+3}, 0x20000")
    e(f"    s_lshr_b32 s{s_tmp}, s2, 4")
    e(f"    s_lshl_b32 s{s_tmp}, s{s_tmp}, 2")
    e(f"    s_load_dword s{s_mask}, s[14:15], s{s_tmp}")
    e(f"    s_mov_b32 s{s_c}, 0x{f2u(128**-0.5 * 1.4426950408889634):08x}                   ; D^-0.5 * log2(e)")
    for sm, val in ((s_M1, 0x22222222), (s_M2, 0x44444444), (s_M3, 0x88888888)):
        e(f"    s_mov_b32 s{sm}, 0x{val:x}")
        e(f"    s_mov_b32 s{sm+1}, 0x{val:x}")
    c("v4/v5: bf16 slot masks of the diagonal P operand (slot = lane&3)")
    e(f"    v_mov_b32 v{X[0]}, 0xffff")
    e(f"    v_mov_b32 v{X[1]}, 0xffff0000")
    e(f"    v_cndmask_b32 v{v_m0}, v{X[0]}, v{X[1]}, s[{s_M1}:{s_M1+1}]")
    e(f"    v_cndmask_b32 v{v_m0}, v{v_m0}, 0, s[{s_M2}:{s_M2+1}]")
    e(f"    v_cndmask_b32 v{v_m0}, v{v_m0}, 0, s[{s_M3}:{s_M3+1}]")
    e(f"    v_cndmask_b32 v{v_m1}, 0, v{X[0]}, s[{s_M2}:{s_M2+1}]")
    e(f"    v_cndmask_b32 v{v_m1}, v{v_m1}, v{X[1]}, s[{s_M3}:{s_M3+1}]")
    for k in range(8): e(f"    v_mov_b32 v{v_acc+k}, 0")
    e(f"    v_mov_b32 v{v_max}, 0xff7fffff")
    e(f"    v_mov_b32 v{v_sum}, 0")
    e(f"    s_mul_i32 s{s_tmp}, s{s_w}, {NIT*S_it}")
    e(f"    v_lshlrev_b32 v{v_sa}, 3, v{v_lane}")
    e(f"    v_add_u32 v{v_sa}, s{s_tmp}, v{v_sa}                    ; LDS address of this wave's scores")
    e(f"    v_mov_b32 v{v_z}, 0")
    e(f"    v_mov_b32 v{v_hist}, 0")
    e(f"    v_mov_b32 v{v_mb}, -1")
    e(f"    s_mov_b32 s{s_A}, 0")
    e(f"    s_mov_b32 s{s_cA}, 0")
    e(f"    s_mov_b32 s{s_base}, 0")
    e(f"    s_mov_b32 m0, 0")
    e(f"    s_bfe_u32 s{s_pw}, s{s_pw}, 0x10003")
    e(f"    s_add_u32 s{s_pw}, s{s_pw}, 1")
    e(f"    s_getreg_b32 s{s_dr}, hwreg(HW_REG_XCC_ID, 0, 1)")
    e(f"    s_cmp_eq_u32 s{s_dr}, 0")
    e(f"    s_cselect_b32 s{s_dr}, {drift}, 0")
    e("    s_barrier")
    for i in range(R0, PD):
        load(i, R0 - 1)

    def D(m, r): return v_D + 4 * m + r
    def extract(dst):
        e("    s_nop 7")
        for s in range(4):
            e(f"    v_cndmask_b32 v{X[s]}, v{D(s,0)}, v{D((s+1)&3,1)}, s[{s_M1}:{s_M1+1}]")
        for s in range(4):
            e(f"    v_cndmask_b32 v{X[s]}, v{X[s]}, v{D((s+2)&3,2)}, s[{s_M2}:{s_M2+1}]")
        for s in (2, 3, 0, 1):
            e(f"    v_cndmask_b32 v{X[s]}, v{X[s]}, v{D((s+3)&3,3)}, s[{s_M3}:{s_M3+1}]")
        e(f"    v_add_f32_dpp v{X[2]}, v{X[3]}, v{X[2]} quad_perm:[3,0,1,2] {DPPF}")
        e(f"    s_nop 0")
        e(f"    v_add_f32_dpp v{X[0]}, v{X[1]}, v{X[0]} quad_perm:[3,0,1,2] {DPPF}")
        e(f"    s_nop 1")
        e(f"    v_add_f32_dpp v{dst}, v{X[2]}, v{X[0]} quad_perm:[2,3,0,1] {DPPF}")
        e(f"    v_max_f32 v{v_max}, v{v_max}, v{dst}")

    def k_iter(it, R):
        cur["hi"] = None
        for p in range(U):
            i = it * U + p
            load(i + PD, R[p] - 1)
            sl = slot_of(i)
            e(f"    v_mfma_f32_16x16x32_bf16 v[{D(p%4,0)}:{D(p%4,3)}], v[{sl}:{sl+3}], v[{v_Q}:{v_Q+3}], 0")
            if p % 4 == 3: extract(v_Sn + p // 4)
        e(f"    ds_write_b64 v{v_sa}, v[{v_Sn}:{v_Sn+1}]")
        e(f"    v_add_u32 v{v_sa}, {S_it}, v{v_sa}")

    def dispatcher(tag, exit_label):
        e(f"L_{tag}_disp:")
        e(f"    s_sub_u32 s{s_cnt}, s{s_cnt}, 1")
        e(f"    s_cbranch_scc1 {exit_label}")
        c("own time at checkpoint m0 (sampled one pass ago) -> history; mailbox as read one pass ago")
        e(f"    s_waitcnt lgkmcnt(0)")
        e(f"    v_readfirstlane_b32 s{s_t2}, v{v_mb}")
        e(f"    v_readfirstlane_b32 s{s_t3}, v{v_mb+1}")
        e(f"    s_add_u32 s{s_tmp}, s{s_now}, s{s_cA}")
        e(f"    v_writelane_b32 v{v_hist}, s{s_tmp}, m0")
        e(f"    s_sub_i32 s{s_A}, s{s_A}, s{s_dr}")
        e(f"    s_cmp_lg_u32 s{s_w}, s{s_pw}")
        e(f"    s_cbranch_scc1 L_{tag}_nopub")
        e(f"    s_or_b32 s{s_tmp}, s{s_now}, 1")
        e(f"    v_mov_b32 v{X[0]}, s{s_tmp}")
        e(f"    s_lshl_b32 s{s_tmp}, m0, 2")
        e(f"    v_mov_b32 v{X[1]}, s{s_tmp}")
        e(f"    ds_write_b32 v{X[1]}, v{X[0]} offset:{lds_T}")
        e(f"L_{tag}_nopub:")
        e(f"    ds_read_b64 v[{v_mb}:{v_mb+1}], v{v_z} offset:{lds_R}")
        e(f"    s_memrealtime s[{s_now}:{s_now+1}]")
        e(f"    s_mov_b32 s{s_cA}, s{s_A}")
        e(f"    s_add_u32 m0, m0, 1")
        e(f"    s_cmp_lt_i32 s{s_t2}, 0")
        e(f"    s_cbranch_scc1 L_{tag}_pick")
        e(f"    v_readlane_b32 s{s_tmp}, v{v_hist}, s{s_t2}")
        e(f"    s_add_i32 s{s_base}, s{s_A}, 200")
        e(f"    s_sub_i32 s{s_tmp}, s{s_tmp}, s{s_t3}")
        e(f"    s_cmp_ge_u32 s{s_t2}, m0                        ; a checkpoint this wave has not reached: far behind")
        e(f"    s_cselect_b32 s{s_base}, s{s_base}, s{s_tmp}")
        e(f"L_{tag}_pick:")
        c("lag behind the reference, less what deeper iterations since then should have gained")
        e(f"    s_sub_i32 s{s_tmp}, s{s_base}, s{s_A}")
        if tag == "v" and endn:
            e(f"    s_cmp_lt_u32 s{s_cnt}, {endn}")
            e(f"    s_cselect_b32 s{s_t2}, {endx}, 0")
            e(f"    s_add_i32 s{s_tmp}, s{s_tmp}, s{s_t2}")
        for m in range(len(ml) - 1, 1, -1):
            e(f"    s_cmp_gt_i32 s{s_tmp}, {ml[m][1]}")
            e(f"    s_cbranch_scc1 L_{tag}_m{m}")
        e(f"    s_cmp_lt_i32 s{s_tmp}, {ml[0][1]}")
        e(f"    s_cbranch_scc1 L_{tag}_m0")
    def bodies(tag, body):
        for m in [1, 0] + list(range(2, len(ml))):
            e(f"L_{tag}_m{m}:                                     ; {ml[m][0][0]} loads in flight")
            if ml[m][2]: e(f"    s_add_i32 s{s_A}, s{s_A}, {ml[m][2]}")
            if stamps: e(f"    s_add_u32 s86, s86, {1 << (8*m)}")
            body([int(ch) for ch in ml[m][0]], m)
            e(f"    s_branch L_{tag}_disp")

    if stamps:
        e(f"    s_mov_b32 s86, 0")
        e(f"    s_waitcnt vmcnt({PD - 1})")
        stamp(2)
    e(f"    s_mov_b32 s{s_cnt}, {NIT-1}")
    dispatcher("k", "L_k_last")
    def kb(R, m):
        k_iter(1, R)
        if stamps:
            e(f"    s_cmp_eq_u32 s{s_cnt}, {NIT - 1 - NIT//2}")
            e(f"    s_cbranch_scc0 L_ns1_{m}")
            stamp(4)
            e(f"L_ns1_{m}:")
    bodies("k", kb)
    e("L_k_last:                                       ; its prefetch runs into V")
    k_iter(NIT - 1, [Rn] * 8)
    stamp(6)
    e(f"    buffer_load_dwordx4 v[{v_KT}:{v_KT+3}], v{v_offK}, s[{s_KT}:{s_KT+3}], 0 offen")
    e(f"    v_and_b32 v{X[0]}, 0xf0, v{v_offV}")
    e(f"    buffer_load_dwordx4 v[{v_VT}:{v_VT+3}], v{X[0]}, s[{s_VT}:{s_VT+3}], 0 offen")
    e(f"    v_subrev_u32 v{v_sa}, {NIT*S_it}, v{v_sa}")
    e(f"    ds_read_b64 v[{v_Sn}:{v_Sn+1}], v{v_sa}")
    def allreduce(reg, op):
        e(f"    {op}_dpp v{reg}, v{reg}, v{reg} quad_perm:[1,0,3,2] {DPPF}")
        e("    s_nop 1")
        e(f"    {op}_dpp v{reg}, v{reg}, v{reg} quad_perm:[2,3,0,1] {DPPF}")
        e("    s_nop 0")
        e(f"    v_mov_b32 v{X[0]}, v{reg}")
        e("    s_nop 1")
        e(f"    v_permlane16_swap_b32 v{X[0]}, v{reg}")
        e("    s_nop 1")
        e(f"    {op} v{reg}, v{reg}, v{X[0]}")
        e("    s_nop 0")
        e(f"    v_mov_b32 v{X[0]}, v{reg}")
        e("    s_nop 1")
        e(f"    v_permlane32_swap_b32 v{X[0]}, v{reg}")
        e("    s_nop 1")
        e(f"    {op} v{reg}, v{reg}, v{X[0]}")
    c("true max of this wave's keys, per head")
    allreduce(v_max, "v_max_f32")
    e(f"    v_mul_f32 v{v_max}, s{s_c}, v{v_max}")
    def mkP(regs, dsts):
        for r in regs: e(f"    v_fma_f32 v{r}, v{r}, s{s_c}, -v{v_max}")
        for r in regs: e(f"    v_exp_f32 v{r}, v{r}")
        e("    s_nop 0")
        for r in regs: e(f"    v_add_f32 v{v_sum}, v{v_sum}, v{r}")
        for r, d in zip(regs, dsts):
            if d is not None: e(f"    v_cvt_pk_bf16_f32 v{d}, v{r}, v{r}")
    e("    s_waitcnt lgkmcnt(0)")
    mkP([v_Sn, v_Sn + 1], [v_P, v_P + 1])
    def andP(A, P, qq):
        e(f"    v_and_b32_dpp v{A}, v{P}, v{v_m0} quad_perm:[{qq},{qq},{qq},{qq}] {DPPF}")
        e(f"    v_and_b32_dpp v{A+1}, v{P}, v{v_m1} quad_perm:[{qq},{qq},{qq},{qq}] {DPPF}")
    def mf(A, sl):
        e(f"    v_mfma_f32_16x16x16_bf16 v[{v_acc}:{v_acc+3}], v[{A}:{A+1}], v[{sl}:{sl+1}], v[{v_acc}:{v_acc+3}]")
        e(f"    v_mfma_f32_16x16x16_bf16 v[{v_acc+4}:{v_acc+7}], v[{A}:{A+1}], v[{sl+2}:{sl+3}], v[{v_acc+4}:{v_acc+7}]")
    def v_iter(it, R, first=False):
        cur["hi"] = None
        e(f"    v_add_u32 v{v_sa}, {S_it}, v{v_sa}")
        e(f"    ds_read_b64 v[{v_Sn}:{v_Sn+1}], v{v_sa}")
        for p in range(U):
            j = it * U + p; i = NL + j
            A = v_A + 2 * (p & 1)
            andP(A, v_P + p // 4, p % 4)
            n = R[p] - 1 + (2 if (first and p < R[p]) else 0)
            load(i + PD, n)
            mf(A, slot_of(i))
            if p == 5:
                e("    s_waitcnt lgkmcnt(0)")
                mkP([v_Sn, v_Sn + 1], [v_P, None])
            if p == 7:
                e(f"    v_cvt_pk_bf16_f32 v{v_P+1}, v{v_Sn+1}, v{v_Sn+1}")
    assert Rn + 1 <= 7
    e("; ---- V phase")
    v_iter(0, [Rn] * 8, first=True)
    c("tree token: logit in log2 units incl. (1 - mask) * -1e9, as a fifth (max, sum = 1) pair")
    e(f"    v_mfma_f32_16x16x32_bf16 v[{D(0,0)}:{D(0,3)}], v[{v_KT}:{v_KT+3}], v[{v_Q}:{v_Q+3}], 0")
    e(f"    s_bitcmp1_b32 s2, 3")
    e(f"    s_cselect_b32 s{s_tmp}, 0, 16")
    e(f"    s_lshl_b32 s{s_mask}, s{s_mask}, s{s_tmp}")
    e(f"    s_and_b32 s{s_mask}, s{s_mask}, 0xffff0000")
    e(f"    s_mov_b32 s{s_cnt}, {NIT-2}")
    e("    s_nop 4")
    e(f"    v_cndmask_b32 v{X[0]}, v{D(0,0)}, v{D(0,1)}, s[{s_M1}:{s_M1+1}]")
    e(f"    v_cndmask_b32 v{X[0]}, v{X[0]}, v{D(0,2)}, s[{s_M2}:{s_M2+1}]")
    e(f"    v_cndmask_b32 v{X[0]}, v{X[0]}, v{D(0,3)}, s[{s_M3}:{s_M3+1}]")
    e(f"    v_mov_b32 v{X[1]}, s{s_mask}")
    e(f"    v_sub_f32 v{X[1]}, 1.0, v{X[1]}")
    e(f"    v_add_f32_dpp v{X[0]}, v{X[0]}, v{X[0]} quad_perm:[1,0,3,2] {DPPF}")
    e(f"    v_mul_f32 v{X[1]}, 0x{f2u(-1e9*1.4426950408889634):08x}, v{X[1]}")
    e(f"    s_nop 0")
    e(f"    v_add_f32_dpp v{X[0]}, v{X[0]}, v{X[0]} quad_perm:[2,3,0,1] {DPPF}")
    e(f"    s_nop 0")
    e(f"    v_fma_f32 v{v_KT}, v{X[0]}, s{s_c}, v{X[1]}")
    e(f"    v_mov_b32 v{v_KT+1}, 1.0")
    dispatcher("v", "L_v_last")
    def vb(R, m):
        v_iter(1, R)
        if stamps:
            e(f"    s_cmp_eq_u32 s{s_cnt}, {NIT - 2 - (NIT//2 - 1)}")
            e(f"    s_cbranch_scc0 L_ns2_{m}")
            stamp(8)
            e(f"L_ns2_{m}:")
    bodies("v", vb)
    e("L_v_last:                                       ; last 8 positions: one load left, merge factors meanwhile")
    stamp(9)
    cur["hi"] = None
    load(total - 1)
    e("    s_nop 1")
    allreduce(v_sum, "v_add_f32")
    e(f"    v_and_b32 v{X[0]}, 12, v{v_lane}")
    e(f"    v_lshlrev_b32 v{X[0]}, 1, v{X[0]}")
    e(f"    s_lshl_b32 s{s_tmp}, s{s_w}, 5")
    e(f"    v_add_u32 v{X[1]}, s{s_tmp}, v{X[0]}")
    e(f"    s_mov_b64 exec, 0x1111")
    e(f"    ds_write_b64 v{X[1]}, v[{v_max}:{v_max+1}] offset:{lds_ml}")
    e(f"    s_cmp_lg_u32 s{s_w}, 0")
    e(f"    s_cbranch_scc1 L_notree")
    e(f"    ds_write_b64 v{X[0]}, v[{v_KT}:{v_KT+1}] offset:{lds_ml + W*32}")
    e("L_notree:")
    e(f"    s_mov_b64 exec, -1")
    e(f"    v_lshrrev_b32 v{X[0]}, 4, v{v_lane}")
    e(f"    v_lshlrev_b32 v{X[0]}, 3, v{X[0]}")
    e(f"    v_add_u32 v{X[1]}, s{s_tmp}, v{X[0]}")
    e("    s_waitcnt lgkmcnt(0)")
    e("    s_barrier")
    for w in range(W + 1):
        e(f"    ds_read_b64 v[{v_ml+2*w}:{v_ml+2*w+1}], v{X[0]} offset:{lds_ml + w*32}")
    e(f"    ds_read_b32 v{v_g}, v{X[1]} offset:{lds_ml}")
    for k in range(4):
        e(f"    v_lshlrev_b32 v{v_tv+2*k}, 16, v{v_VT+k}")
        e(f"    v_and_b32 v{v_tv+2*k+1}, 0xffff0000, v{v_VT+k}")
    e("    s_waitcnt lgkmcnt(0)")
    c("overall max M, denominator L; own factor 2^(m_w - M) / L; wave 0 also carries the tree token")
    e(f"    v_max_f32 v{X[2]}, v{v_ml}, v{v_ml+2}")
    for w in range(2, W + 1): e(f"    v_max_f32 v{X[2]}, v{X[2]}, v{v_ml+2*w}")
    for w in range(W + 1): e(f"    v_sub_f32 v{v_ml+2*w}, v{v_ml+2*w}, v{X[2]}")
    e(f"    v_sub_f32 v{v_g}, v{v_g}, v{X[2]}")
    for w in range(W + 1): e(f"    v_exp_f32 v{v_ml+2*w}, v{v_ml+2*w}")
    e(f"    v_exp_f32 v{v_g}, v{v_g}")
    e(f"    v_mul_f32 v{X[3]}, v{v_ml}, v{v_ml+1}")
    for w in range(1, W + 1): e(f"    v_fmac_f32 v{X[3]}, v{v_ml+2*w}, v{v_ml+2*w+1}")
    e(f"    v_rcp_f32 v{X[3]}, v{X[3]}")
    e(f"    s_cmp_eq_u32 s{s_w}, 0")
    e(f"    s_cselect_b32 s{s_tmp}, 1.0, 0")
    e(f"    v_mul_f32 v{v_g}, v{v_g}, v{X[3]}")
    e(f"    v_mul_f32 v{X[3]}, v{v_ml+2*W}, v{X[3]}")
    e(f"    v_mul_f32 v{X[3]}, s{s_tmp}, v{X[3]}")
    for k in range(8): e(f"    v_mul_f32 v{v_tv+k}, v{X[3]}, v{v_tv+k}")
    e(f"    s_lshl_b32 s{s_tmp}, s{s_w}, 11")
    e(f"    v_lshlrev_b32 v{X[2]}, 5, v{v_lane}")
    e(f"    v_add_u32 v{X[2]}, s{s_tmp}, v{X[2]}")
    e(f"    s_lshl_b32 s{s_tmp}, s{s_w}, 9")
    e(f"    v_lshlrev_b32 v{X[3]}, 3, v{v_lane}")
    e(f"    v_add_u32 v{X[3]}, s{s_tmp}, v{X[3]}")
    e(f"    v_lshrrev_b32 v{v_sa}, 1, v{X[3]}")
    for p in range(8):
        i = total - 8 + p
        A = v_A + 2 * (p & 1)
        andP(A, v_P + p // 4, p % 4)
        e(f"    s_waitcnt vmcnt({7 - p})")
        e("    s_nop 0")
        mf(A, slot_of(i))
    stamp(10)
    e("    s_nop 6")
    c("scaled partial outputs (lane = head, 8 dims) -> LDS; wave h adds up head h and stores it")
    for k in range(8):
        e(f"    v_fma_f32 v{v_acc+k}, v{v_acc+k}, v{v_g}, v{v_tv+k}")
        if k == 3: e(f"    ds_write_b128 v{X[2]}, v[{v_acc}:{v_acc+3}] offset:{lds_O}")
    e(f"    ds_write_b128 v{X[2]}, v[{v_acc+4}:{v_acc+7}] offset:{lds_O+16}")
    e("    s_waitcnt lgkmcnt(0)")
    e("    s_barrier")
    for w in range(W):
        e(f"    ds_read_b64 v[{v_D+2*w}:{v_D+2*w+1}], v{X[3]} offset:{lds_O + w*2048}")
    e("    s_waitcnt lgkmcnt(2)")
    e(f"    v_add_f32 v{v_D}, v{v_D}, v{v_D+2}")
    e(f"    v_add_f32 v{v_D+1}, v{v_D+1}, v{v_D+3}")
    e("    s_waitcnt lgkmcnt(0)")
    e(f"    v_add_f32 v{v_D+4}, v{v_D+4}, v{v_D+6}")
    e(f"    v_add_f32 v{v_D+5}, v{v_D+5}, v{v_D+7}")
    e(f"    v_add_f32 v{v_D}, v{v_D}, v{v_D+4}")
    e(f"    v_add_f32 v{v_D+1}, v{v_D+1}, v{v_D+5}")
    e(f"    v_cvt_pk_bf16_f32 v{v_D}, v{v_D}, v{v_D+1}")
    e(f"    buffer_store_dword v{v_D}, v{v_sa}, s[{s_O}:{s_O+3}], 0 offen")
    if stamps:
        e("    s_memrealtime s[82:83]")
        e("    s_waitcnt lgkmcnt(0)")
        for k in (3, 5, 7):
            e(f"    s_mov_b32 s{60+2*k}, 0")
            e(f"    s_mov_b32 s{61+2*k}, 0")
        e(f"    s_mul_i32 s{s_tmp}, s88, {W}")
        e(f"    s_add_u32 s{s_tmp}, s{s_tmp}, s{s_w}")
        e(f"    s_lshl_b32 s{s_tmp}, s{s_tmp}, 7")
        e(f"    s_add_u32 s92, s90, s{s_tmp}")
        e(f"    s_addc_u32 s93, s91, 0")
        e(f"    s_mov_b32 s94, 128")
        e(f"    s_mov_b32 s95, 0x20000")
        e(f"    s_getreg_b32 s84, hwreg(HW_REG_XCC_ID)")
        e(f"    s_getreg_b32 s85, hwreg(HW_REG_HW_ID)")
        e(f"    s_mov_b32 s87, s{s_base}")
        for k in range(28): e(f"    v_mov_b32 v{v_ring+k}, s{60+k}")
        e(f"    v_mov_b32 v{v_lane}, 0")
        e(f"    s_mov_b64 exec, 1")
        for k in range(7):
            e(f"    buffer_store_dwordx4 v[{v_ring+4*k}:{v_ring+4*k+3}], v{v_lane}, s[92:95], 0 offen offset:{16*k}")
    e("L_end:")
    e("    s_endpgm")
    h_ws = 4; h_X = 8; h_c = 12; h_t = 13; h_row = 14; h_bud = 15; h_a = 16; h_b = 17; h_n = 18; h_gc = 19
    h_I = 21; h_S = 23; h_G = 24; h_off = 28; h_gr = 29; h_gn = 30; h_gm = 31
    e("; ---- helper wave: reference time of every second checkpoint = mean over the (up to 16) publishing")
    e("; workgroups on this die, shifted by the die's offset from the other dies (only speed depends on it)")
    e("L_helper:")
    e(f"    s_waitcnt lgkmcnt(0)")
    e(f"    s_load_dwordx2 s[{h_ws}:{h_ws+1}], s[0:1], 64")
    e(f"    v_lshlrev_b32 v2, 2, v{v_lane}")
    e(f"    v_mov_b32 v3, 0")
    e(f"    v_mov_b32 v4, -1")
    e(f"    ds_write_b32 v2, v3 offset:{lds_T}")
    e(f"    ds_write_b32 v3, v4 offset:{lds_R}")
    e(f"    s_getreg_b32 s{h_a}, hwreg(HW_REG_XCC_ID, 0, 3)")
    e(f"    s_lshl_b32 s{h_a}, s{h_a}, 13")
    e(f"    s_add_u32 s{h_a}, s{h_a}, 0x400000")
    e(f"    s_waitcnt lgkmcnt(0)")
    e("    s_barrier")
    e(f"    s_add_u32 s{h_X}, s{h_ws}, s{h_a}                       ; rows of this die: 128 B per checkpoint")
    e(f"    s_addc_u32 s{h_X+1}, s{h_ws+1}, 0")
    e(f"    s_mov_b32 s{h_X+2}, 8192")
    e(f"    s_mov_b32 s{h_X+3}, 0x20000")
    e(f"    s_add_u32 s{h_G}, s{h_ws}, 0x420000")
    e(f"    s_addc_u32 s{h_G+1}, s{h_ws+1}, 0")
    e(f"    s_mov_b32 s{h_G+2}, 0x8000")
    e(f"    s_mov_b32 s{h_G+3}, 0x20000")
    e(f"    v_and_b32 v14, 7, v{v_lane}")
    e(f"    v_lshlrev_b32 v14, 7, v14")
    e(f"    s_and_b32 s{h_a}, s2, 7")
    e(f"    s_lshl_b32 s{h_a}, s{h_a}, 7")
    e(f"    v_mov_b32 v15, s{h_a}")
    for r in (h_off, h_I, h_S, h_gr, h_gn, h_gm, h_gc, h_c, h_row): e(f"    s_mov_b32 s{r}, 0")
    e(f"    v_and_b32 v5, 60, v2")
    e(f"    s_lshr_b32 s{h_a}, s2, 3")
    e(f"    s_lshl_b32 s{h_a}, s{h_a}, 2")
    e(f"    v_mov_b32 v6, s{h_a}")
    e(f"    s_mov_b32 s{h_bud}, 20000")
    e("L_h_next:")
    e(f"    s_lshl_b32 s{h_a}, s{h_c}, 2")
    e(f"    v_mov_b32 v7, s{h_a}")
    e("L_h_w1:                                         ; own checkpoint reached?")
    e(f"    ds_read_b32 v8, v7 offset:{lds_T}")
    e(f"    s_sub_u32 s{h_bud}, s{h_bud}, 1")
    e(f"    s_cbranch_scc1 L_end")
    e(f"    s_waitcnt lgkmcnt(0)")
    e(f"    v_readfirstlane_b32 s{h_t}, v8")
    e(f"    s_nop 0")
    e(f"    s_cmp_lg_u32 s{h_t}, 0")
    e(f"    s_cbranch_scc1 L_h_pub")
    e(f"    s_sleep {slp}")
    e(f"    s_branch L_h_w1")
    e("L_h_pub:")
    e(f"    s_cmp_ge_u32 s2, 128")
    e(f"    s_cbranch_scc1 L_h_w2")
    e(f"    s_cmp_ge_u32 s2, 8")
    e(f"    s_cbranch_scc1 L_h_st")
    c("workgroups 0-7: look at the other dies' means of the last exchanged checkpoint")
    e(f"    s_cmp_eq_u32 s{h_gr}, 0")
    e(f"    s_cbranch_scc1 L_h_adj")
    e(f"    buffer_load_dword v9, v14, s[{h_G}:{h_G+3}], s{h_gr} offen sc1")
    e(f"    s_waitcnt vmcnt(0)")
    e(f"    v_subrev_u32 v9, s{h_gm}, v9")
    e(f"    v_add_u32 v11, 1000, v9")
    e(f"    v_cmp_gt_u32 vcc, 2000, v11                 ; written in this launch?")
    e(f"    s_nop 1")
    e(f"    v_cndmask_b32 v9, {gfill}, v9, vcc               ; not there yet: that die is behind")
    e(f"    s_nop 1")
    e(f"    v_add_u32_dpp v9, v9, v9 quad_perm:[1,0,3,2] {DPPF}")
    e(f"    s_nop 1")
    e(f"    v_add_u32_dpp v9, v9, v9 quad_perm:[2,3,0,1] {DPPF}")
    e(f"    s_nop 1")
    e(f"    v_add_u32_dpp v9, v9, v9 row_half_mirror {DPPF}")
    e(f"    s_cmp_eq_u64 vcc, exec")
    e(f"    s_cselect_b32 s{h_gr}, 0, s{h_gr}")
    e(f"    v_readfirstlane_b32 s{h_a}, v9")
    e(f"    s_nop 0")
    e(f"    s_mul_i32 s{h_a}, s{h_a}, -2")
    e(f"    s_sub_i32 s{h_I}, s{h_a}, s{h_S}")
    e("L_h_adj:")
    e(f"    s_mul_i32 s{h_a}, s{h_I}, {kappa}")
    e(f"    s_ashr_i32 s{h_a}, s{h_a}, 3")
    e(f"    s_min_i32 s{h_a}, s{h_a}, {omax}")
    e(f"    s_max_i32 s{h_off}, s{h_a}, {-omin}")
    e(f"    s_sub_i32 s{h_a}, s{h_off}, {16*dz[1]}")
    e(f"    s_max_i32 s{h_a}, s{h_a}, 0")
    e(f"    s_add_i32 s{h_b}, s{h_off}, {16*dz[0]}")
    e(f"    s_min_i32 s{h_b}, s{h_b}, 0")
    e(f"    s_add_i32 s{h_a}, s{h_a}, s{h_b}")
    e(f"    s_mul_i32 s{h_a}, s{h_a}, {gg}")
    e(f"    s_ashr_i32 s{h_a}, s{h_a}, 5                      ; gain expected from this row's shift")
    e(f"    s_sub_i32 s{h_I}, s{h_I}, s{h_a}")
    e(f"    s_add_i32 s{h_S}, s{h_S}, s{h_a}")
    e(f"    v_subrev_u32 v8, s{h_off}, v8                   ; the shift rides on this entry of the row")
    e("L_h_st:")
    e(f"    s_mov_b64 exec, 1")
    e(f"    buffer_store_dword v8, v6, s[{h_X}:{h_X+3}], s{h_row} offen")
    e(f"    s_mov_b64 exec, -1")
    e("L_h_w2:                                         ; row complete, or own waves two checkpoints further")
    e(f"    buffer_load_dword v9, v5, s[{h_X}:{h_X+3}], s{h_row} offen sc1")
    e(f"    ds_read_b32 v10, v7 offset:{lds_T + 4*giveup}")
    e(f"    s_sub_u32 s{h_bud}, s{h_bud}, 1")
    e(f"    s_cbranch_scc1 L_end")
    e(f"    s_waitcnt vmcnt(0) lgkmcnt(0)")
    e(f"    v_subrev_u32 v9, s{h_t}, v9")
    e(f"    v_readfirstlane_b32 s{h_n}, v10")
    e(f"    v_add_u32 v11, 2000, v9")
    e(f"    v_cmp_gt_u32 vcc, 4000, v11                 ; written in this launch?")
    e(f"    s_nop 1")
    e(f"    s_cmp_eq_u64 vcc, exec")
    e(f"    s_cbranch_scc1 L_h_sum")
    e(f"    s_cmp_lg_u32 s{h_n}, 0")
    e(f"    s_cbranch_scc1 L_h_fill")
    e(f"    s_sleep {slp}")
    e(f"    s_branch L_h_w2")
    e("L_h_fill:")
    e(f"    v_cndmask_b32 v9, 0, v9, vcc")
    e("L_h_sum:")
    e(f"    s_nop 1")
    e(f"    v_add_u32_dpp v9, v9, v9 quad_perm:[1,0,3,2] {DPPF}")
    e(f"    s_nop 1")
    e(f"    v_add_u32_dpp v9, v9, v9 quad_perm:[2,3,0,1] {DPPF}")
    e(f"    s_nop 1")
    e(f"    v_add_u32_dpp v9, v9, v9 row_half_mirror {DPPF}")
    e(f"    s_nop 1")
    e(f"    v_add_u32_dpp v9, v9, v9 row_mirror {DPPF}")
    e(f"    v_mov_b32 v12, s{h_c}")
    e(f"    v_ashrrev_i32 v9, 4, v9")
    e(f"    v_add_u32 v13, s{h_t}, v9")
    e(f"    ds_write_b64 v3, v[12:13] offset:{lds_R}")
    e(f"    s_cmp_ge_u32 s2, 8")
    e(f"    s_cbranch_scc1 L_h_adv")
    e(f"    s_cmp_lg_u32 s{h_gc}, s{h_c}")
    e(f"    s_cbranch_scc1 L_h_adv")
    c("workgroups 0-7: hand the unshifted mean to the other dies now and then")
    e(f"    s_add_u32 s{h_gc}, s{h_gc}, {gp}")
    e(f"    s_mov_b32 s{h_S}, 0")
    e(f"    s_ashr_i32 s{h_a}, s{h_off}, 4")
    e(f"    v_add_u32 v16, s{h_a}, v13")
    e(f"    s_add_u32 s{h_gn}, s{h_gn}, 1024")
    e(f"    s_mov_b32 s{h_gr}, s{h_gn}")
    e(f"    v_readfirstlane_b32 s{h_gm}, v16")
    e(f"    s_mov_b64 exec, 1")
    e(f"    buffer_store_dword v16, v15, s[{h_G}:{h_G+3}], s{h_gr} offen sc0 sc1")
    e(f"    s_mov_b64 exec, -1")
    e("L_h_adv:")
    e(f"    s_add_u32 s{h_c}, s{h_c}, {cp}")
    e(f"    s_add_u32 s{h_row}, s{h_row}, 128")
    e(f"    s_cmp_le_u32 s{h_c}, {lastc}")
    e(f"    s_cbranch_scc1 L_h_next")
    e("    s_endpgm")
    e('.section .rodata,"a"')
    e(".p2align 6")
    e(f".amdhsa_kernel {kname}")
    e(f"  .amdhsa_next_free_vgpr {nv}")
    e(f"  .amdhsa_next_free_sgpr {ns}")
    e(f"  .amdhsa_accum_offset {(nv+3)//4*4}")
    e("  .amdhsa_group_segment_fixed_size 0")
    e("  .amdhsa_kernarg_size 72")
    e("  .amdhsa_user_sgpr_count 2")
    e("  .amdhsa_user_sgpr_kernarg_segment_ptr 1")
    e("  .amdhsa_system_sgpr_workgroup_id_x 1")
    e(".end_amdhsa_kernel")
    return "\n".join(out) + "\n"

if __name__ == "__main__":
    ap = argparse.ArgumentParser()
    ap.add_argument("--stamps", action="store_true")
    ap.add_argument("-o", default="/dev/stdout")
    a, _ = ap.parse_known_args()
    open(a.o, "w").write(gen(a.stamps))
```
